```python
import torch

def _softmax(x, axis=-1):
    return torch.softmax(x, dim=axis)
def _gelu(x):
    return torch.nn.functional.gelu(x, approximate="tanh")
def _silu(x):
    return torch.nn.functional.silu(x)
def _sigmoid(x):
    return torch.sigmoid(x)
def _layernorm(x, axis=-1, eps=1e-5):
    m = x.mean(dim=axis, keepdim=True)
    v = x.var(dim=axis, keepdim=True, unbiased=False)
    return (x - m) / torch.sqrt(v + eps)
def _scatter_add(tgt, idx, src, axis=0):
    return tgt.clone().index_add_(axis, idx, src)
def _segment_sum(src, seg, n):
    out = torch.zeros((n,) + src.shape[1:], dtype=src.dtype)
    return out.index_add_(0, seg, src)
def _pad(x, pw):
    flat = tuple(v for pair in reversed(pw) for v in pair)
    return torch.nn.functional.pad(x, flat)

kernel_name = 'standalone__mha_softmax__near_ridge'

def setup_inputs():

    _w = (lambda a: (lambda t: t.to(torch.bfloat16) if t.is_floating_point() else t)(torch.as_tensor(a)))
    B, H, Sq, Sk, D = 8, 32, 496, 1024, 128
    return {
        "q": _w((lambda *s: torch.randn(*s, dtype=torch.bfloat16) * 0.8)(B, H, Sq, D)),
        "k": _w((lambda *s: torch.randn(*s, dtype=torch.bfloat16) * 0.8)(B, H, Sk, D)),
        "v": _w((lambda *s: torch.randn(*s, dtype=torch.bfloat16) * 0.05)(B, H, Sk, D)),
    }

def reference(q, k, v):
    scale = q.shape[-1] ** -0.5
    scores = torch.einsum("bhqd,bhkd->bhqk", q, k) * scale
    p = _softmax(scores, axis=-1)
    return torch.einsum("bhqk,bhkd->bhqd", p, v)
```

```python
import re
def regs(tok):
    tok = tok.strip().lstrip("-")
    m = re.fullmatch(r"([vas])(\d+)", tok)
    if m: return {(m.group(1), int(m.group(2)))}
    m = re.fullmatch(r"([vas])\[(\d+):(\d+)\]", tok)
    if m: return {(m.group(1), i) for i in range(int(m.group(2)), int(m.group(3)) + 1)}
    if tok in ("vcc", "m0", "exec"): return {(tok, 0)}
    return set()
TRANS = ("v_exp_", "v_rcp_", "v_log_", "v_rsq_", "v_sqrt_")
def parse(line):
    parts = line.split(None, 1)
    op = parts[0]
    args = [a.strip() for a in parts[1].split(",")] if len(parts) > 1 else []
    if args: args[-1] = args[-1].split()[0] if args[-1].split() else args[-1]
    d = dict(op=op, w=set(), r=set(), kind="other", line=line, states=1)
    if op == "s_nop": d["states"] = int(args[0]) + 1
    if op.startswith("v_mfma"):
        d["kind"] = "mfma"; d["w"] = regs(args[0]); d["ab"] = regs(args[1]) | regs(args[2]); d["c"] = regs(args[3]); d["r"] = d["ab"] | d["c"]
        d["passes"] = 4 if "16x16x32" in op else 8
    elif op.startswith("v_"):
        d["kind"] = "valu"
        d["w"] = regs(args[0])
        for a in args[1:]: d["r"] |= regs(a)
        if "permlane" in op: d["w"] |= regs(args[1]); d["r"] |= regs(args[0])
        if op.startswith("v_fmac") or op.startswith("v_dot2c"): d["r"] |= regs(args[0])
        if op.startswith("v_cndmask") and len(args) == 3: d["r"] |= {("vcc", 0)}
    elif op.startswith("ds_read"):
        d["kind"] = "ds"; d["w"] = regs(args[0]); d["r"] = regs(args[1])
    elif op.startswith("ds_write"):
        d["kind"] = "ds"
        for a in args: d["r"] |= regs(a)
    elif op.startswith("buffer_load"):
        d["kind"] = "vmem"
        if line.rstrip().endswith("lds") or " lds" in line:
            d["lds"] = True
            for a in args: d["r"] |= regs(a)
            d["r"] |= {("m0", 0)}
        else:
            d["w"] = regs(args[0])
            for a in args[1:]: d["r"] |= regs(a)
    elif op.startswith("buffer_store"):
        d["kind"] = "vmem"; d["store"] = regs(args[0]) if ("x4" in op or "x3" in op) else set()
        for a in args: d["r"] |= regs(a)
    elif op.startswith("s_"):
        d["kind"] = "salu"
        if args and not op.startswith(("s_cmp", "s_waitcnt", "s_cbranch", "s_branch", "s_nop", "s_barrier", "s_setprio")):
            d["w"] = regs(args[0])
            for a in args[1:]: d["r"] |= regs(a)
    return d
def check(lines, verbose=True):
    ins = [parse(x) for x in lines if not (x.endswith(":") or x.startswith(";") or x.startswith("."))]
    bad = 0
    for i, b in enumerate(ins):
        dist = 0
        for k in range(i - 1, max(-1, i - 24), -1):
            a = ins[k]
            need = 0; why = ""
            if a["kind"] == "mfma":
                n = {4: 8, 8: 12}[a["passes"]]
                if b["kind"] in ("valu", "ds", "vmem") and (a["w"] & (b["r"] | b["w"])): need, why = n, "mfma D -> valu/mem"
                if b["kind"] == "mfma":
                    if a["w"] & b["ab"]: need, why = n, "mfma D -> mfma AB"
                    elif a["w"] & b["c"] and a["w"] != b["c"]: need, why = n - 2, "mfma D -> partial C"
                if b["kind"] == "valu" and (a["c"] & b["w"]): need, why = max(need, {4: 3, 8: 7}[a["passes"]]), why or "mfma C WAR"
            if a["kind"] == "valu":
                vw = {x for x in a["w"] if x[0] in "va"}
                sw = {x for x in a["w"] if x[0] == "s" or x[0] == "vcc"}
                if b["kind"] == "mfma" and vw & b["r"]: need, why = 2, "valu -> mfma"
                if a["op"].startswith(TRANS) and b["kind"] == "valu" and not b["op"].startswith(TRANS) and vw & b["r"]: need, why = 1, "trans -> valu"
                if "permlane" in b["op"] and vw & b["r"]: need, why = 2, "valu -> permlane"
                if b["op"].startswith(("v_readfirstlane", "v_readlane")) and vw & b["r"]: need, why = 1, "valu -> readlane"
                if b["kind"] == "vmem" and sw & b["r"]: need, why = 5, "valu sgpr -> vmem"
                if b["kind"] == "valu" and sw & b["r"]: need, why = 2, "valu sgpr -> valu"
            if a["kind"] == "salu" and ("m0", 0) in a["w"] and b.get("lds"): need, why = 1, "m0 -> lds dma"
            if a.get("store") and (a["store"] & b["w"]): need, why = 2, "store data WAR"
            if need > dist:
                bad += 1
                if verbose and bad < 20: print(f"HAZARD {why}: need {need} have {dist}\n   {a['line']}\n   {b['line']}")
            dist += a["states"]
    return bad
```

```python
import re, sys, struct, math

class Cfg:
    NS = 4
    L = 3
    NB = 4
    NT = 32
    store_flags = ""
    stamps = False
    no_dma = False
    fallback = True
    force_fallback = False

NAME = "standalone__mha_softmax__near_ridge_kernel"
C_SCALE = math.log2(math.e) / math.sqrt(128.0)
def f32bits(x): return struct.unpack("<I", struct.pack("<f", x))[0]

V_KRD, V_VRD, V_KDMA, V_VDMA, V_QOFF, V_OOFF = 1, 2, 3, 4, 5, 6
V_T = 8
V_S = 16
V_K = 48
V_V = 80
V_L = 112
V_M = 120
V_Q = 128
def Qr(u, kk): return V_Q + u * 16 + kk * 4
def Or(u, dt): return u * 32 + dt * 4
def Sr(b): return V_S + 8 * b
S_SRDQ, S_SRDK, S_SRDV, S_SRDO = 8, 12, 16, 20
S_W, S_GOFF, S_LB, S_CNT = 24, 25, 26, 27
S_C = 30
S_STAMP = 34

def vr(i, n=1): return f"v{i}" if n == 1 else f"v[{i}:{i+n-1}]"
def ar(i, n=1): return f"a{i}" if n == 1 else f"a[{i}:{i+n-1}]"
def sr(i, n=1): return f"s{i}" if n == 1 else f"s[{i}:{i+n-1}]"

class Node:
    def __init__(s, text):
        s.text = text; s.pre = []; s.shadow = []; s.mem = []; s.marker = None
        s.done_half = None
        s.needs_P = None
class Op:
    def __init__(s, text, kind, item, deps=()):
        s.text = text; s.kind = kind; s.item = item; s.deps = list(deps); s.pos = None; s.half = None

class Gen:
    def __init__(g, cfg):
        g.c = cfg; g.out = []; g.lds_q = []; g.vm_q = []
    def e(g, t):
        for line in t.split("\n"):
            line = line.strip()
            if line: g.out.append(line)
    def pos(g): return len([x for x in g.out if not x.endswith(":") and not x.startswith(";") and not x.startswith(".")])
    def ds(g, text, tag):
        g.e(text); g.lds_q.append(tag)
    def vm(g, text, tag):
        g.e(text); g.vm_q.append(tag)
    def wait_lds(g, tag):
        idx = max(i for i, t in enumerate(g.lds_q) if t == tag) if tag in g.lds_q else None
        if idx is None: return False
        n = len(g.lds_q) - 1 - idx
        assert n <= 15
        g.e(f"s_waitcnt lgkmcnt({n})"); g.lds_q = g.lds_q[idx + 1:]
        return True
    def wait_vm(g, tag):
        if tag not in g.vm_q: return False
        idx = max(i for i, t in enumerate(g.vm_q) if t == tag)
        n = len(g.vm_q) - 1 - idx
        assert n <= 63
        g.e(f"s_waitcnt vmcnt({n})"); g.vm_q = g.vm_q[idx + 1:]
        return True

    def kread(g, j, i):
        kt, kk = i // 4, i % 4
        off = (j % g.c.NS) * 8192 + kt * 4096 + (kk // 2) * 1024 + (kk % 2) * 512
        return (f"ds_read_b128 {vr(V_K + 4 * i, 4)}, {vr(V_KRD)} offset:{off}", ("K", j, i))
    def vread(g, j, dt, X):
        off = g.c.NS * 8192 + (j % g.c.NS) * 8192 + X * 4096 + (dt // 4) * 1024 + (dt % 4) * 256
        return (f"ds_read_b64_tr_b16 {vr(V_V + 4 * dt + 2 * X, 2)}, {vr(V_VRD)} offset:{off}", ("V", j, dt))
    def dma_ops(g, j):
        r = []
        for isv in (0, 1):
            for dh in (0, 1):
                lds = isv * g.c.NS * 8192 + (j % g.c.NS) * 8192 + dh * 1024 - dh * 128
                m0 = f"s_add_u32 m0, {sr(S_LB)}, {lds}"
                off = f" offset:{128 * dh}" if dh else ""
                d = f"buffer_load_dwordx4 {vr(V_VDMA if isv else V_KDMA)}, {sr(S_SRDV if isv else S_SRDK, 4)}, {sr(S_GOFF)} offen{off} lds"
                r.append((m0, d))
        return r
    def prescale(g, u):
        r = []
        for k in range(16):
            x = V_Q + u * 16 + k; t = V_T + 2 * (k % 4)
            r.append((f"v_lshlrev_b32 {vr(t)}, 16, {vr(x)}", f"v_and_b32 {vr(t+1)}, 0xffff0000, {vr(x)}",
                      f"v_pk_mul_f32 {vr(t,2)}, {vr(t,2)}, {sr(S_C,2)}", f"v_cvt_pk_bf16_f32 {vr(x)}, {vr(t)}, {vr(t+1)}"))
        out = []
        for k0 in range(0, 16, 4):
            for st in range(4):
                for k in range(k0, k0 + 4): out.append(r[k][st])
        return out
    def stamp(g, idx):
        if not g.c.stamps: return
        g.e(f"s_memrealtime {sr(S_STAMP + 2 * idx, 2)}")

    def prologue(g):
        c = g.c
        g.e("s_cmp_ge_u32 s2, 256")
        g.e("s_cbranch_scc1 L_done")
        g.stamp(0)
        g.e("s_load_dwordx4 s[4:7], s[0:1], 0")
        g.e("s_load_dwordx4 s[56:59], s[0:1], 16")
        if c.stamps: g.e("s_load_dwordx2 s[60:61], s[0:1], 40")
        g.e("v_lshrrev_b32 v8, 6, v0")
        g.e("v_and_b32 v0, 63, v0")
        g.e(f"v_readfirstlane_b32 {sr(S_W)}, v8")
        g.e("v_and_b32 v9, 15, v0")
        g.e("v_lshrrev_b32 v10, 4, v0")
        g.e("v_and_b32 v11, 7, v9")
        g.e("v_lshrrev_b32 v12, 2, v11")
        g.e("v_lshlrev_b32 v12, 1, v12")
        g.e("v_xor_b32 v12, v12, v10")
        g.e("v_lshl_add_u32 v12, v11, 2, v12")
        g.e("v_lshlrev_b32 v12, 4, v12")
        g.e("v_lshrrev_b32 v13, 3, v9")
        g.e(f"v_lshl_add_u32 {vr(V_KRD)}, v13, 11, v12")
        g.e("v_and_b32 v12, 31, v0")
        g.e("v_lshlrev_b32 v12, 3, v12")
        g.e("v_lshrrev_b32 v13, 5, v0")
        g.e(f"v_lshl_add_u32 {vr(V_VRD)}, v13, 11, v12")
        g.e("v_bfe_u32 v11, v0, 2, 3")
        g.e("v_lshrrev_b32 v12, 2, v11")
        g.e("v_lshlrev_b32 v12, 1, v12")
        g.e("v_and_b32 v14, 3, v0")
        g.e("v_xor_b32 v12, v12, v14")
        g.e("v_lshlrev_b32 v12, 4, v12")
        g.e("v_lshl_add_u32 v12, v13, 6, v12")
        g.e(f"v_lshl_add_u32 {vr(V_KDMA)}, v11, 8, v12")
        g.e("v_bfe_u32 v11, v0, 1, 3")
        g.e("v_and_b32 v12, 1, v0")
        g.e("v_lshlrev_b32 v12, 4, v12")
        g.e("v_lshl_add_u32 v12, v10, 5, v12")
        g.e(f"v_lshl_add_u32 {vr(V_VDMA)}, v11, 8, v12")
        g.e(f"s_lshl_b32 s28, {sr(S_W)}, 15")
        g.e("v_lshlrev_b32 v12, 8, v9")
        g.e("v_add_u32 v12, s28, v12")
        g.e(f"v_lshl_add_u32 {vr(V_QOFF)}, v10, 4, v12")
        g.e("v_and_b32 v14, 1, v10")
        g.e("v_lshl_add_u32 v12, v14, 5, v12")
        g.e(f"v_lshl_add_u32 {vr(V_OOFF)}, v13, 4, v12")
        g.e(f"s_lshl_b32 {sr(S_LB)}, {sr(S_W)}, 11")
        g.e(f"s_mov_b32 {sr(S_GOFF)}, {sr(S_LB)}")
        g.e(f"s_mov_b32 {sr(S_C)}, 0x{f32bits(C_SCALE):08x}")
        g.e(f"s_mov_b32 {sr(S_C+1)}, 0x{f32bits(C_SCALE):08x}")
        g.e("s_mul_i32 s28, s2, 126976")
        g.e("s_lshl_b32 s29, s2, 18")
        g.e("s_waitcnt lgkmcnt(0)")
        for srd, lo, hi, offs, size in ((S_SRDK, 6, 7, 29, 262144), (S_SRDQ, 4, 5, 28, 126976), (S_SRDV, 56, 57, 29, 262144), (S_SRDO, 58, 59, 28, 126976)):
            g.e(f"s_add_u32 {sr(srd)}, s{lo}, s{offs}")
            g.e(f"s_addc_u32 {sr(srd+1)}, s{hi}, 0")
            g.e(f"s_mov_b32 {sr(srd+2)}, {size}")
            g.e(f"s_mov_b32 {sr(srd+3)}, 0x20000")
        def dma(j, sel):
            ops = g.dma_ops(j)
            for k in sel:
                g.e(ops[k][0]); g.e("s_nop 0"); g.vm(ops[k][1], ("T", j))
        def qload(u):
            if u: g.e(f"v_add_u32 {vr(V_QOFF)}, 0x1000, {vr(V_QOFF)}")
            for kk in range(4):
                off = f" offset:{64*kk}" if kk else ""
                g.vm(f"buffer_load_dwordx4 {vr(Qr(u,kk),4)}, {vr(V_QOFF)}, {sr(S_SRDQ,4)}, 0 offen{off}", ("Q", u))
        dma(0, (0, 1)); qload(0); dma(0, (2, 3))
        for u in range(1, 8): qload(u)
        for j in range(1, c.NS):
            g.e(f"s_add_u32 {sr(S_GOFF)}, {sr(S_GOFF)}, 8192")
            dma(j, (0, 1, 2, 3))
        for u in range(8): g.e(f"v_mov_b32 {vr(V_L+u)}, 0")
        g.wait_vm(("T", 0))
        g.e("s_barrier")
        g.stamp(1)
        for i in range(8): g.ds(*g.kread(0, i))
        for dt in range(8):
            for X in (0, 1): g.ds(*g.vread(0, dt, X))
            if dt == 2: g.wait_lds(("K", 0, 7))

    def build_nodes(g):
        c = g.c; NI = c.NT * 8
        nodes = []
        def qk(n):
            j, u = divmod(n, 8); b = n % c.NB; r = []
            for i in range(8):
                kt, kk = i // 4, i % 4
                s = Sr(b) + 4 * kt
                cc = "0" if kk == 0 else vr(s, 4)
                nd = Node(f"v_mfma_f32_16x16x32_bf16 {vr(s,4)}, {vr(V_K+4*i,4)}, {vr(Qr(u,kk),4)}, {cc}")
                nd.wait = ("L", ("K", j, i)) if u == 0 else None
                if kk == 3: nd.done_half = (n, kt)
                if u == 7 and j + 1 < c.NT and i % 2 == 1:
                    nd.mem.append(("ds",) + g.kread(j + 1, i - 1)); nd.mem.append(("ds",) + g.kread(j + 1, i))
                r.append(nd)
            if u == 0: r[0].marker = j
            if j == 0: r[0].pre = [("waitvm", ("Q", u))] + [("e", t) for t in g.prescale(u)]
            return r
        def pv(n):
            j, u = divmod(n, 8); b = n % c.NB; r = []
            for dt in range(8):
                o = Or(u, dt)
                cc = "0" if j == 0 else ar(o, 4)
                nd = Node(f"v_mfma_f32_16x16x32_bf16 {ar(o,4)}, {vr(V_V+4*dt,4)}, {vr(Sr(b),4)}, {cc}")
                nd.wait = ("L", ("V", j, dt)) if u == 0 else None
                nd.needs_P = n
                if u == 7 and j + 1 < c.NT:
                    for X in (0, 1): nd.mem.append(("ds",) + g.vread(j + 1, dt, X))
                r.append(nd)
            return r
        for n in range(NI + c.L):
            pair = []
            if n < NI: pair += qk(n)
            if n >= c.L: pair += pv(n - c.L)
            if n < NI:
                j, u = divmod(n, 8)
                if u == c.L + 1:
                    if j + 1 < c.NT:
                        pair[0].shadow.append(("waitvm", ("T", j + 1)))
                        pair[1].shadow.append(("e", "s_barrier"))
                    if j + c.NS < c.NT and not c.no_dma:
                        pair[2].shadow.append(("e", f"s_add_u32 {sr(S_GOFF)}, {sr(S_GOFF)}, 8192"))
                        for k, (m0, d) in enumerate(g.dma_ops(j + c.NS)):
                            pair[3 + 3 * k].shadow.append(("e", m0))
                            pair[4 + 3 * k].mem.append(("vm", d, ("T", j + c.NS)))
            nodes += pair
        for i, nd in enumerate(nodes):
            w = getattr(nd, "wait", None)
            if w:
                if i == 0 or nd.pre: nd.pre.append(("waitlds", w[1]))
                else: nodes[i - 1].shadow.append(("waitlds", w[1]))
        return nodes

    def sm_ops(g, n):
        c = g.c; u = n % 8; X = Sr(n % c.NB); l = V_L + u
        ops = []
        ex = [Op(f"v_exp_f32 {vr(X+i)}, {vr(X+i)}", "e", n) for i in range(8)]
        for i in range(8): ex[i].half = i // 4
        ad = [Op(f"v_add_f32 {vr(l)}, {vr(l)}, {vr(X+i)}", "p", n, [ex[i]]) for i in range(8)]
        cv = []
        for k in range(4):
            deps = [ex[2*k], ex[2*k+1], ad[k]] + ([cv[k // 2]] if k > 0 else [])
            cv.append(Op(f"v_cvt_pk_bf16_f32 {vr(X+k)}, {vr(X+2*k)}, {vr(X+2*k+1)}", "p", n, deps))
        order = [ex[0], ex[1], ad[0], ad[1], ex[2], ex[3], cv[0], ad[2], ex[4], ad[3], cv[1], ex[5], ad[4], ad[5], ex[6], ex[7], cv[2], ad[6], ad[7], cv[3]]
        return order

    def do_item(g, it):
        k = it[0]
        if k == "e": g.e(it[1])
        elif k == "waitvm": return g.wait_vm(it[1])
        elif k == "waitlds": return g.wait_lds(it[1])
        elif k == "ds": g.ds(it[1], it[2])
        elif k == "vm": g.vm(it[1], it[2])
        return True

    def mainloop(g):
        c = g.c
        nodes = g.build_nodes()
        queue = []
        half_pos = {}
        cnt = [g.pos()]
        def E(fn):
            n0 = len(g.out); r = fn(); cnt[0] += len(g.out) - n0; return r
        def ready(op):
            if op.kind == "e":
                p = half_pos.get((op.item, op.half))
                return p is not None and cnt[0] - p - 1 >= 8
            for d in op.deps:
                if d.pos is None: return False
                if d.kind == "e" and cnt[0] - d.pos - 1 < 1: return False
            return True
        def place(op):
            op.pos = cnt[0]; E(lambda: g.e(op.text)); queue.remove(op)
        def flush(item):
            while any(o.item <= item for o in queue):
                for o in queue:
                    if o.item <= item and ready(o): place(o); break
                else: E(lambda: g.e("s_nop 0"))
        g.over = 0
        last_cvt = {}
        for i, nd in enumerate(nodes):
            if nd.marker is not None: g.out.append(f"; STEP {nd.marker}")
            for it in nd.pre: E(lambda: g.do_item(it))
            if nd.needs_P is not None:
                if any(o.item <= nd.needs_P for o in queue):
                    g.out.append(f"; flush item {nd.needs_P}")
                    flush(nd.needs_P)
                lp = max(o.pos for o in g.allops[nd.needs_P])
                while cnt[0] - lp - 1 < 2: E(lambda: g.e("s_nop 0"))
            mp = cnt[0]
            E(lambda: g.e(nd.text))
            if nd.done_half:
                half_pos[nd.done_half] = mp
                if nd.done_half[1] == 0:
                    ops = g.sm_ops(nd.done_half[0]); g.allops[nd.done_half[0]] = ops; queue += ops
            cap = 2; nsh = 0
            for it in nd.shadow:
                if E(lambda: g.do_item(it)): nsh += 1
            if nsh > 1: cap -= nsh - 1
            for it in nd.mem:
                E(lambda: g.do_item(it)); cap -= 2 if it[0] == "vm" else 1
            if cap < 0: g.over += -cap
            while cap > 0:
                pick = None
                rd = [o for o in queue if ready(o)]
                if not rd: break
                if cap == 2:
                    pick = rd[0]
                    if pick.kind == "p":
                        pl = [o for o in rd if o.kind == "p"]
                        es = [o for o in rd if o.kind == "e"]
                        nxt_ok = len(pl) >= 2 or any(o.kind == "p" and o not in rd and all(d.pos is not None or d is pick for d in o.deps) and not any(d.kind == "e" and cnt[0] + 1 - d.pos - 1 < 1 for d in o.deps if d.pos is not None) for o in queue)
                        if not nxt_ok and es: pick = es[0]
                else:
                    pl = [o for o in rd if o.kind == "p"]
                    if not pl: break
                    pick = pl[0]
                place(pick); cap -= 2 if pick.kind == "e" else 1
        assert not queue

    def epilogue(g):
        c = g.c
        g.out.append("; EPILOGUE")
        g.stamp(2)
        for u in range(8): g.e(f"v_mov_b32 {vr(V_T+u)}, {vr(V_L+u)}")
        g.e("s_nop 1")
        for u in range(8): g.e(f"v_permlane16_swap_b32 {vr(V_T+u)}, {vr(V_L+u)}")
        for u in range(8): g.e(f"v_add_f32 {vr(V_L+u)}, {vr(V_L+u)}, {vr(V_T+u)}")
        for u in range(8): g.e(f"v_mov_b32 {vr(V_T+u)}, {vr(V_L+u)}")
        g.e("s_nop 1")
        for u in range(8): g.e(f"v_permlane32_swap_b32 {vr(V_T+u)}, {vr(V_L+u)}")
        for u in range(8): g.e(f"v_add_f32 {vr(V_L+u)}, {vr(V_L+u)}, {vr(V_T+u)}")
        if c.fallback:
            lo, hi = f32bits(2.0 ** -30), f32bits(2.0 ** 30)
            for u in range(8): g.e(f"v_subrev_u32 {vr(V_T+u)}, 0x{lo:08x}, {vr(V_L+u)}")
            g.e(f"v_max3_u32 {vr(V_T)}, {vr(V_T)}, {vr(V_T+1)}, {vr(V_T+2)}")
            g.e(f"v_max3_u32 {vr(V_T+3)}, {vr(V_T+3)}, {vr(V_T+4)}, {vr(V_T+5)}")
            g.e(f"v_max3_u32 {vr(V_T)}, {vr(V_T)}, {vr(V_T+6)}, {vr(V_T+7)}")
            g.e(f"v_max_u32 {vr(V_T)}, {vr(V_T)}, {vr(V_T+3)}")
            g.e(f"v_cmp_lt_u32 vcc, 0x{hi-lo:08x}, {vr(V_T)}")
            if c.force_fallback: g.e("s_branch L_fallback")
            else: g.e("s_cbranch_vccnz L_fallback")
        g.e("L_final:")
        for u in range(8): g.e(f"v_rcp_f32 {vr(V_L+u)}, {vr(V_L+u)}")
        blocks = [V_S + 8 * i for i in range(12)]
        bi = 0
        for u in range(8):
            if u: g.e(f"v_add_u32 {vr(V_OOFF)}, 0x1000, {vr(V_OOFF)}")
            ts = []
            for p in range(4):
                t = blocks[bi % len(blocks)]; bi += 1; ts.append(t)
                for i in range(8): g.e(f"v_accvgpr_read_b32 {vr(t+i)}, {ar(Or(u,2*p)+i)}")
            rl = V_L + u
            sel = "op_sel_hi:[1,0]" if rl % 2 == 0 else "op_sel:[0,1] op_sel_hi:[1,1]"
            rp = vr(rl & ~1, 2)
            for t in ts:
                for i in range(0, 8, 2): g.e(f"v_pk_mul_f32 {vr(t+i,2)}, {vr(t+i,2)}, {rp} {sel}")
            for t in ts:
                for i in range(4): g.e(f"v_cvt_pk_bf16_f32 {vr(t+i)}, {vr(t+2*i)}, {vr(t+2*i+1)}")
            g.e("s_nop 1")
            for p, t in enumerate(ts):
                g.e(f"v_permlane16_swap_b32 {vr(t)}, {vr(t+2)}")
                g.e(f"v_permlane16_swap_b32 {vr(t+1)}, {vr(t+3)}")
            for p, t in enumerate(ts):
                off = f" offset:{64*p}" if p else ""
                g.e(f"buffer_store_dwordx4 {vr(t,4)}, {vr(V_OOFF)}, {sr(S_SRDO,4)}, 0 offen{off}{c.store_flags}")
        if c.stamps:
            g.stamp(3)
            g.e("s_waitcnt vmcnt(0)")
            g.stamp(4)
            g.e("s_waitcnt lgkmcnt(0)")
            g.e("s_mov_b32 s62, 0x1000000\ns_mov_b32 s63, 0x20000")
            g.e(f"s_lshl_b32 s28, s2, 2\ns_add_u32 s28, s28, {sr(S_W)}\ns_lshl_b32 s28, s28, 5")
            for k in range(6): g.e(f"v_mov_b32 v{8+k}, {sr(S_STAMP+2*k)}")
            g.e("s_mov_b64 exec, 1")
            g.e("buffer_store_dwordx4 v[8:11], off, s[60:63], s28")
            g.e("buffer_store_dwordx2 v[12:13], off, s[60:63], s28 offset:16")
            g.e("s_waitcnt vmcnt(0)")
        g.e("L_done:")
        g.e("s_endpgm")

    def fallback(g):
        c = g.c
        base = 2 * c.NS * 8192
        g.e("L_fallback:")
        g.e("s_waitcnt vmcnt(0) lgkmcnt(0)")
        g.e(f"s_lshl_b32 s28, {sr(S_W)}, 14")
        g.e(f"s_add_u32 s28, s28, {base}")
        g.e(f"v_add_u32 {vr(V_KRD)}, s28, {vr(V_KRD)}")
        g.e(f"v_add_u32 {vr(V_VRD)}, s28, {vr(V_VRD)}")
        for u in range(8):
            g.e(f"v_mov_b32 {vr(V_L+u)}, 0")
            g.e(f"v_mov_b32 {vr(V_M+u)}, 0xff800000")
        for i in range(256): g.e(f"v_accvgpr_write_b32 {ar(i)}, 0")
        g.e(f"s_mov_b32 {sr(S_GOFF)}, 0")
        g.e("L_fb_loop:")
        for isv in (0, 1):
            for kb in range(4):
                for dh in (0, 1):
                    g.e(f"s_add_u32 m0, s28, {isv*8192 + (2*kb+dh)*1024}")
                    g.e(f"s_add_u32 s29, {sr(S_GOFF)}, {kb*2048 + dh*128}")
                    g.e(f"buffer_load_dwordx4 {vr(V_VDMA if isv else V_KDMA)}, {sr(S_SRDV if isv else S_SRDK,4)}, s29 offen lds")
        g.e("s_waitcnt vmcnt(0)")
        for i in range(8):
            kt, kk = i // 4, i % 4
            g.e(f"ds_read_b128 {vr(V_K+4*i,4)}, {vr(V_KRD)} offset:{kt*4096 + (kk//2)*1024 + (kk%2)*512}")
        g.e("s_waitcnt lgkmcnt(0)")
        for dt in range(8):
            for X in (0, 1):
                g.e(f"ds_read_b64_tr_b16 {vr(V_V+4*dt+2*X,2)}, {vr(V_VRD)} offset:{8192 + X*4096 + (dt//4)*1024 + (dt%4)*256}")
            if dt == 3: g.e("s_waitcnt lgkmcnt(0)")
        g.e("s_waitcnt lgkmcnt(0)")
        X = V_S; T = V_T
        for u in range(8):
            for i in range(8):
                kt, kk = i // 4, i % 4
                s = X + 4 * kt
                g.e(f"v_mfma_f32_16x16x32_bf16 {vr(s,4)}, {vr(V_K+4*i,4)}, {vr(Qr(u,kk),4)}, {'0' if kk == 0 else vr(s,4)}")
            g.e("s_nop 7")
            g.e(f"v_max3_f32 {vr(T)}, {vr(X)}, {vr(X+1)}, {vr(X+2)}")
            g.e(f"v_max3_f32 {vr(T)}, {vr(T)}, {vr(X+3)}, {vr(X+4)}")
            g.e(f"v_max3_f32 {vr(T)}, {vr(T)}, {vr(X+5)}, {vr(X+6)}")
            g.e(f"v_max3_f32 {vr(T)}, {vr(T)}, {vr(X+7)}, {vr(V_M+u)}")
            g.e(f"v_mov_b32 {vr(T+1)}, {vr(T)}")
            g.e("s_nop 1")
            g.e(f"v_permlane16_swap_b32 {vr(T+1)}, {vr(T)}")
            g.e(f"v_max_f32 {vr(T)}, {vr(T)}, {vr(T+1)}")
            g.e(f"v_mov_b32 {vr(T+1)}, {vr(T)}")
            g.e("s_nop 1")
            g.e(f"v_permlane32_swap_b32 {vr(T+1)}, {vr(T)}")
            g.e(f"v_max_f32 {vr(T)}, {vr(T)}, {vr(T+1)}")
            g.e(f"v_sub_f32 {vr(T+1)}, {vr(V_M+u)}, {vr(T)}")
            g.e(f"v_exp_f32 {vr(T+1)}, {vr(T+1)}")
            g.e(f"v_mov_b32 {vr(V_M+u)}, {vr(T)}")
            for i in range(8): g.e(f"v_sub_f32 {vr(X+i)}, {vr(X+i)}, {vr(T)}")
            for i in range(8): g.e(f"v_exp_f32 {vr(X+i)}, {vr(X+i)}")
            g.e(f"v_mul_f32 {vr(V_L+u)}, {vr(V_L+u)}, {vr(T+1)}")
            for i in range(8): g.e(f"v_add_f32 {vr(V_L+u)}, {vr(V_L+u)}, {vr(X+i)}")
            for k in range(4): g.e(f"v_cvt_pk_bf16_f32 {vr(X+k)}, {vr(X+2*k)}, {vr(X+2*k+1)}")
            for i0 in range(0, 32, 4):
                for i in range(4): g.e(f"v_accvgpr_read_b32 {vr(X+8+i)}, {ar(Or(u,0)+i0+i)}")
                for i in range(4): g.e(f"v_mul_f32 {vr(X+8+i)}, {vr(X+8+i)}, {vr(T+1)}")
                for i in range(4): g.e(f"v_accvgpr_write_b32 {ar(Or(u,0)+i0+i)}, {vr(X+8+i)}")
            g.e("s_nop 1")
            for dt in range(8):
                o = Or(u, dt)
                g.e(f"v_mfma_f32_16x16x32_bf16 {ar(o,4)}, {vr(V_V+4*dt,4)}, {vr(X,4)}, {ar(o,4)}")
        g.e(f"s_add_u32 {sr(S_GOFF)}, {sr(S_GOFF)}, 8192")
        g.e(f"s_cmp_lt_u32 {sr(S_GOFF)}, {c.NT*8192}")
        g.e("s_cbranch_scc1 L_fb_loop")
        g.e("s_nop 7")
        for u in range(8): g.e(f"v_mov_b32 {vr(V_T+u)}, {vr(V_L+u)}")
        g.e("s_nop 1")
        for u in range(8): g.e(f"v_permlane16_swap_b32 {vr(V_T+u)}, {vr(V_L+u)}")
        for u in range(8): g.e(f"v_add_f32 {vr(V_L+u)}, {vr(V_L+u)}, {vr(V_T+u)}")
        for u in range(8): g.e(f"v_mov_b32 {vr(V_T+u)}, {vr(V_L+u)}")
        g.e("s_nop 1")
        for u in range(8): g.e(f"v_permlane32_swap_b32 {vr(V_T+u)}, {vr(V_L+u)}")
        for u in range(8): g.e(f"v_add_f32 {vr(V_L+u)}, {vr(V_L+u)}, {vr(V_T+u)}")
        g.e("s_branch L_final")

    def fold(g, lin):
        c = g.c
        idx = {}
        for i, x in enumerate(lin):
            m = re.match(r"; STEP (\d+)", x)
            if m: idx[int(m.group(1))] = i
        def seg(a, b): return [x for x in lin[idx[a]:idx[b]] if not x.startswith("; STEP")]
        U = c.NS
        first = U
        nit = (c.NT - 2 * U) // U
        ref = seg(first, first + U)
        for k in range(1, nit):
            assert seg(first + k * U, first + (k + 1) * U) == ref, f"loop iteration {k} differs"
        out = lin[:idx[first]]
        out += [f"s_mov_b32 {sr(S_CNT)}, {nit}", ".p2align 6", "L_loop:"]
        body = list(ref)
        out += body
        out += [f"s_sub_u32 {sr(S_CNT)}, {sr(S_CNT)}, 1", f"s_cmp_lg_u32 {sr(S_CNT)}, 0", "s_cbranch_scc1 L_loop"]
        out += lin[idx[first + nit * U]:]
        return out

    def build(g):
        c = g.c
        g.allops = {}
        g.prologue()
        g.mainloop()
        g.epilogue()
        g.linear = list(g.out)
        body = g.fold(g.out)
        g.out = []
        if c.fallback: g.fallback()
        fb = g.out
        lds = 2 * c.NS * 8192 + (4 * 16384 if c.fallback else 0)
        hdr = open("standalone__mha_softmax__near_ridge.s.ref").read().split("\n")
        head = [x for x in hdr if x.startswith(";") and "@launch" not in x and "Override" not in x and "grid=ceil" not in x and not x.startswith("    ")]
        txt = "\n".join(head) + f"\n; @launch grid=(256,1,1) block=(256,1,1) lds={lds}\n"
        txt += f""".amdgcn_target "amdgcn-amd-amdhsa--gfx950"
.text
.globl {NAME}
.p2align 8
.type {NAME},@function
{NAME}:
"""
        txt += "\n".join(("" if (x.endswith(":") or x.startswith(".") or x.startswith(";")) else "    ") + x for x in body + fb)
        txt += f"""
.section .rodata,"a"
.p2align 6
.amdhsa_kernel {NAME}
  .amdhsa_next_free_vgpr 512
  .amdhsa_next_free_sgpr 72
  .amdhsa_accum_offset 256
  .amdhsa_group_segment_fixed_size 0
  .amdhsa_kernarg_size 48
  .amdhsa_user_sgpr_count 2
  .amdhsa_user_sgpr_kernarg_segment_ptr 1
  .amdhsa_system_sgpr_workgroup_id_x 1
.end_amdhsa_kernel
"""
        g.fb = fb
        return txt

if __name__ == "__main__":
    cfg = Cfg()
    outp = sys.argv[1]
    for a in sys.argv[2:]:
        k, v = a.split("=")
        cur = getattr(cfg, k)
        setattr(cfg, k, (v == "1") if isinstance(cur, bool) else (int(v) if isinstance(cur, int) else v.replace("+", " ")))
    g = Gen(cfg)
    txt = g.build()
    open(outp, "w").write(txt)
    from hazard import check
    n = check(g.linear) + check(g.fb + g.linear[g.linear.index("L_final:"):])
    flushes = [x for x in g.linear if x.startswith("; flush")]
    print(f"wrote {outp}: {len(txt)} bytes, overflow slots={g.over}, flushes={len(flushes)} {flushes[:6]}, hazards={n}")
```

```python
import re, sys, struct, math

class Cfg:
    NS = 4
    L = 3
    NB = 4
    NT = 32
    store_flags = ""
    kv_flags = " nt"
    q_flags = " nt"
    T1POS = 5
    QLA = 3
    stamps = False
    no_dma = False
    fallback = True
    force_fallback = False

NAME = "standalone__mha_softmax__near_ridge_kernel"
C_SCALE = math.log2(math.e) / math.sqrt(128.0)
def f32bits(x): return struct.unpack("<I", struct.pack("<f", x))[0]

V_KRD, V_VRD, V_KDMA, V_VDMA, V_QOFF, V_OOFF = 1, 2, 3, 4, 5, 6
V_T = 8
V_S = 16
V_K = 48
V_V = 80
V_L = 112
V_M = 120
V_Q = 128
def Qr(u, kk): return V_Q + u * 16 + kk * 4
def Or(u, dt): return u * 32 + dt * 4
def Sr(b): return V_S + 8 * b
S_SRDQ, S_SRDK, S_SRDV, S_SRDO = 8, 12, 16, 20
S_W, S_GOFF, S_LB, S_CNT = 24, 25, 26, 27
S_C = 30
S_STAMP = 34

def vr(i, n=1): return f"v{i}" if n == 1 else f"v[{i}:{i+n-1}]"
def ar(i, n=1): return f"a{i}" if n == 1 else f"a[{i}:{i+n-1}]"
def sr(i, n=1): return f"s{i}" if n == 1 else f"s[{i}:{i+n-1}]"

class Node:
    def __init__(s, text):
        s.text = text; s.pre = []; s.shadow = []; s.mem = []; s.marker = None
        s.done_half = None
        s.needs_P = None
class Op:
    def __init__(s, text, kind, item, deps=()):
        s.text = text; s.kind = kind; s.item = item; s.deps = list(deps); s.pos = None; s.half = None

class Gen:
    def __init__(g, cfg):
        g.nst = 0; g.stamp_names = []; g.c = cfg; g.out = []; g.lds_q = []; g.vm_q = []; g.vm_seen = set()
    def e(g, t):
        for line in t.split("\n"):
            line = line.strip()
            if line: g.out.append(line)
    def pos(g): return len([x for x in g.out if not x.endswith(":") and not x.startswith(";") and not x.startswith(".")])
    def ds(g, text, tag):
        g.e(text); g.lds_q.append(tag)
    def vm(g, text, tag):
        g.e(text); g.vm_q.append(tag); g.vm_seen.add(tag)
    def wait_lds(g, tag):
        idx = max(i for i, t in enumerate(g.lds_q) if t == tag) if tag in g.lds_q else None
        if idx is None: return False
        n = len(g.lds_q) - 1 - idx
        assert n <= 15
        g.e(f"s_waitcnt lgkmcnt({n})"); g.lds_q = g.lds_q[idx + 1:]
        return True
    def wait_vm(g, tag):
        if tag not in g.vm_q:
            assert tag in g.vm_seen, f"wait on never-issued {tag}"
            return False
        idx = max(i for i, t in enumerate(g.vm_q) if t == tag)
        n = len(g.vm_q) - 1 - idx
        assert n <= 63
        g.e(f"s_waitcnt vmcnt({n})"); g.vm_q = g.vm_q[idx + 1:]
        return True

    def kread(g, j, i):
        kt, kk = i // 4, i % 4
        off = (j % g.c.NS) * 8192 + kt * 4096 + (kk // 2) * 1024 + (kk % 2) * 512
        return (f"ds_read_b128 {vr(V_K + 4 * i, 4)}, {vr(V_KRD)} offset:{off}", ("K", j, i))
    def vread(g, j, dt, X):
        off = (j % g.c.NS) * 8192 + X * 4096 + (dt // 4) * 1024 + (dt % 4) * 256
        return (f"ds_read_b64_tr_b16 {vr(V_V + 4 * dt + 2 * X, 2)}, {vr(V_VRD)} offset:{off}", ("V", j, dt))
    def dma_ops(g, j):
        r = []
        for isv in (0, 1):
            for dh in (0, 1):
                lds = isv * g.c.NS * 8192 + (j % g.c.NS) * 8192 + dh * 1024 - dh * 128
                m0 = f"s_add_u32 m0, {sr(S_LB)}, {lds}"
                off = f" offset:{128 * dh}" if dh else ""
                d = f"buffer_load_dwordx4 {vr(V_VDMA if isv else V_KDMA)}, {sr(S_SRDV if isv else S_SRDK, 4)}, {sr(S_GOFF)} offen{off}{g.c.kv_flags} lds"
                r.append((m0, d))
        return r
    def prescale(g, u):
        r = []
        for k in range(16):
            x = V_Q + u * 16 + k; t = V_T + 2 * (k % 4)
            r.append((f"v_lshlrev_b32 {vr(t)}, 16, {vr(x)}", f"v_and_b32 {vr(t+1)}, 0xffff0000, {vr(x)}",
                      f"v_pk_mul_f32 {vr(t,2)}, {vr(t,2)}, {sr(S_C,2)}", f"v_cvt_pk_bf16_f32 {vr(x)}, {vr(t)}, {vr(t+1)}"))
        out = []
        for k0 in range(0, 16, 4):
            for st in range(4):
                for k in range(k0, k0 + 4): out.append(r[k][st])
        return out
    def stamp(g, name, cyc=False):
        if not g.c.stamps: return
        idx = g.nst; g.nst += 1; assert idx < 11
        g.stamp_names.append(name)
        g.e(f"{'s_memtime' if cyc else 's_memrealtime'} {sr(S_STAMP + 2 * idx, 2)}")

    def prologue(g):
        c = g.c
        g.e("s_cmp_ge_u32 s2, 256")
        g.e("s_cbranch_scc1 L_done")
        g.stamp('start')
        g.e("s_load_dwordx4 s[4:7], s[0:1], 0")
        g.e("s_load_dwordx4 s[56:59], s[0:1], 16")
        if c.stamps: g.e("s_load_dwordx2 s[60:61], s[0:1], 40")
        g.e("v_lshrrev_b32 v8, 6, v0")
        g.e("v_and_b32 v0, 63, v0")
        g.e(f"v_readfirstlane_b32 {sr(S_W)}, v8")
        g.e("v_and_b32 v9, 15, v0")
        g.e("v_lshrrev_b32 v10, 4, v0")
        g.e("v_and_b32 v11, 7, v9")
        g.e("v_lshrrev_b32 v12, 2, v11")
        g.e("v_lshlrev_b32 v12, 1, v12")
        g.e("v_xor_b32 v12, v12, v10")
        g.e("v_lshl_add_u32 v12, v11, 2, v12")
        g.e("v_lshlrev_b32 v12, 4, v12")
        g.e("v_lshrrev_b32 v13, 3, v9")
        g.e(f"v_lshl_add_u32 {vr(V_KRD)}, v13, 11, v12")
        g.e("v_and_b32 v12, 31, v0")
        g.e("v_lshlrev_b32 v12, 3, v12")
        g.e("v_lshrrev_b32 v13, 5, v0")
        g.e(f"v_lshl_add_u32 {vr(V_VRD)}, v13, 11, v12")
        g.e(f"v_add_u32 {vr(V_VRD)}, {c.NS * 8192}, {vr(V_VRD)}")
        g.e("v_bfe_u32 v11, v0, 2, 3")
        g.e("v_lshrrev_b32 v12, 2, v11")
        g.e("v_lshlrev_b32 v12, 1, v12")
        g.e("v_and_b32 v14, 3, v0")
        g.e("v_xor_b32 v12, v12, v14")
        g.e("v_lshlrev_b32 v12, 4, v12")
        g.e("v_lshl_add_u32 v12, v13, 6, v12")
        g.e(f"v_lshl_add_u32 {vr(V_KDMA)}, v11, 8, v12")
        g.e("v_bfe_u32 v11, v0, 1, 3")
        g.e("v_and_b32 v12, 1, v0")
        g.e("v_lshlrev_b32 v12, 4, v12")
        g.e("v_lshl_add_u32 v12, v10, 5, v12")
        g.e(f"v_lshl_add_u32 {vr(V_VDMA)}, v11, 8, v12")
        g.e(f"s_lshl_b32 s28, {sr(S_W)}, 15")
        g.e("v_lshlrev_b32 v12, 8, v9")
        g.e("v_add_u32 v12, s28, v12")
        g.e(f"v_lshl_add_u32 {vr(V_QOFF)}, v10, 4, v12")
        g.e("v_and_b32 v14, 1, v10")
        g.e("v_lshl_add_u32 v12, v14, 5, v12")
        g.e(f"v_lshl_add_u32 {vr(V_OOFF)}, v13, 4, v12")
        g.e(f"s_lshl_b32 {sr(S_LB)}, {sr(S_W)}, 11")
        g.e(f"s_mov_b32 {sr(S_GOFF)}, {sr(S_LB)}")
        g.e(f"s_mov_b32 {sr(S_C)}, 0x{f32bits(C_SCALE):08x}")
        g.e(f"s_mov_b32 {sr(S_C+1)}, 0x{f32bits(C_SCALE):08x}")
        g.e("s_mul_i32 s28, s2, 126976")
        g.e("s_lshl_b32 s29, s2, 18")
        g.e("s_waitcnt lgkmcnt(0)")
        for srd, lo, hi, offs, size in ((S_SRDK, 6, 7, 29, 262144), (S_SRDQ, 4, 5, 28, 126976), (S_SRDV, 56, 57, 29, 262144), (S_SRDO, 58, 59, 28, 126976)):
            g.e(f"s_add_u32 {sr(srd)}, s{lo}, s{offs}")
            g.e(f"s_addc_u32 {sr(srd+1)}, s{hi}, 0")
            g.e(f"s_mov_b32 {sr(srd+2)}, {size}")
            g.e(f"s_mov_b32 {sr(srd+3)}, 0x20000")
        def dma(j, sel):
            ops = g.dma_ops(j)
            for k in sel:
                g.e(ops[k][0]); g.e("s_nop 0"); g.vm(ops[k][1], ("T", j))
        def qload(u):
            if u: g.e(f"v_add_u32 {vr(V_QOFF)}, 0x1000, {vr(V_QOFF)}")
            for kk in range(4):
                off = f" offset:{64*kk}" if kk else ""
                g.vm(f"buffer_load_dwordx4 {vr(Qr(u,kk),4)}, {vr(V_QOFF)}, {sr(S_SRDQ,4)}, 0 offen{off}{c.q_flags}", ("Q", u))
        def tile(j):
            g.e(f"s_add_u32 {sr(S_GOFF)}, {sr(S_GOFF)}, 8192")
            dma(j, (0, 1, 2, 3))
        dma(0, (0, 1)); g.vm_q[-1] = ("TK", 0); qload(0); dma(0, (2, 3))
        later = [(lambda u=u: qload(u)) for u in range(1, 8)] + [(lambda j=j: tile(j)) for j in range(2, c.NS)]
        later.insert(c.T1POS, lambda: tile(1))
        for k in range(c.QLA - 1): later.pop(0)()
        g.later = later
        for u in range(8): g.e(f"v_mov_b32 {vr(V_L+u)}, 0")
        g.stamp('issued')
        g.wait_vm(("T", 0))
        g.stamp('T0')
        g.e("s_barrier")
        if c.stamps: g.e("s_waitcnt lgkmcnt(0)")
        for i in range(8): g.ds(*g.kread(0, i))
        for dt in range(8):
            for X in (0, 1): g.ds(*g.vread(0, dt, X))
            if dt == 2: g.wait_lds(("K", 0, 7))

    def build_nodes(g):
        c = g.c; NI = c.NT * 8
        nodes = []
        def qk(n):
            j, u = divmod(n, 8); b = n % c.NB; r = []
            for i in range(8):
                kt, kk = i // 4, i % 4
                s = Sr(b) + 4 * kt
                cc = "0" if kk == 0 else vr(s, 4)
                nd = Node(f"v_mfma_f32_16x16x32_bf16 {vr(s,4)}, {vr(V_K+4*i,4)}, {vr(Qr(u,kk),4)}, {cc}")
                nd.wait = ("L", ("K", j, i)) if u == 0 else None
                if kk == 3: nd.done_half = (n, kt)
                if u == 7 and j + 1 < c.NT and i % 2 == 1:
                    nd.mem.append(("ds",) + g.kread(j + 1, i - 1)); nd.mem.append(("ds",) + g.kread(j + 1, i))
                r.append(nd)
            if u == 0: r[0].marker = j
            if j == 0: r[0].pre = [("later",), ("waitvm", ("Q", u))] + [("e", t) for t in g.prescale(u)]
            if j == 0 and u == 7: r[0].pre += [("later",)] * 8
            return r
        def pv(n):
            j, u = divmod(n, 8); b = n % c.NB; r = []
            for dt in range(8):
                o = Or(u, dt)
                cc = "0" if j == 0 else ar(o, 4)
                nd = Node(f"v_mfma_f32_16x16x32_bf16 {ar(o,4)}, {vr(V_V+4*dt,4)}, {vr(Sr(b),4)}, {cc}")
                nd.wait = ("L", ("V", j, dt)) if u == 0 else None
                nd.needs_P = n
                if u == 7 and j + 1 < c.NT:
                    for X in (0, 1): nd.mem.append(("ds",) + g.vread(j + 1, dt, X))
                r.append(nd)
            return r
        for n in range(NI + c.L):
            pair = []
            if n < NI: pair += qk(n)
            if n >= c.L: pair += pv(n - c.L)
            if n < NI:
                j, u = divmod(n, 8)
                if u == (7 if j == 0 else c.L + 1):
                    if j + 1 < c.NT:
                        pair[0].shadow.append(("waitvm", ("T", j + 1)))
                        pair[1].shadow.append(("e", "s_barrier"))
                    if j + c.NS < c.NT and not c.no_dma:
                        pair[2].shadow.append(("e", f"s_add_u32 {sr(S_GOFF)}, {sr(S_GOFF)}, 8192"))
                        for k, (m0, d) in enumerate(g.dma_ops(j + c.NS)):
                            pair[3 + 3 * k].shadow.append(("e", m0))
                            pair[4 + 3 * k].mem.append(("vm", d, ("T", j + c.NS)))
            nodes += pair
        for i, nd in enumerate(nodes):
            w = getattr(nd, "wait", None)
            if w:
                if i == 0 or nd.pre: nd.pre.append(("waitlds", w[1]))
                else: nodes[i - 1].shadow.append(("waitlds", w[1]))
        return nodes

    def sm_ops(g, n):
        c = g.c; u = n % 8; X = Sr(n % c.NB); l = V_L + u
        ops = []
        ex = [Op(f"v_exp_f32 {vr(X+i)}, {vr(X+i)}", "e", n) for i in range(8)]
        for i in range(8): ex[i].half = i // 4
        ad = [Op(f"v_add_f32 {vr(l)}, {vr(l)}, {vr(X+i)}", "p", n, [ex[i]]) for i in range(8)]
        cv = []
        for k in range(4):
            deps = [ex[2*k], ex[2*k+1], ad[k]] + ([cv[k // 2]] if k > 0 else [])
            cv.append(Op(f"v_cvt_pk_bf16_f32 {vr(X+k)}, {vr(X+2*k)}, {vr(X+2*k+1)}", "p", n, deps))
        order = [ex[0], ex[1], ad[0], ad[1], ex[2], ex[3], cv[0], ad[2], ex[4], ad[3], cv[1], ex[5], ad[4], ad[5], ex[6], ex[7], cv[2], ad[6], ad[7], cv[3]]
        return order

    def do_item(g, it):
        k = it[0]
        if k == "e": g.e(it[1])
        elif k == "waitvm": return g.wait_vm(it[1])
        elif k == "waitlds": return g.wait_lds(it[1])
        elif k == "ds": g.ds(it[1], it[2])
        elif k == "vm": g.vm(it[1], it[2])
        elif k == "later":
            if g.later: g.later.pop(0)()
        return True

    def mainloop(g):
        c = g.c
        nodes = g.build_nodes()
        queue = []
        half_pos = {}
        cnt = [g.pos()]
        def E(fn):
            n0 = len(g.out); r = fn(); cnt[0] += len(g.out) - n0; return r
        def ready(op):
            if op.kind == "e":
                p = half_pos.get((op.item, op.half))
                return p is not None and cnt[0] - p - 1 >= 8
            for d in op.deps:
                if d.pos is None: return False
                if d.kind == "e" and cnt[0] - d.pos - 1 < 1: return False
            return True
        def place(op):
            op.pos = cnt[0]; E(lambda: g.e(op.text)); queue.remove(op)
        def flush(item):
            while any(o.item <= item for o in queue):
                for o in queue:
                    if o.item <= item and ready(o): place(o); break
                else: E(lambda: g.e("s_nop 0"))
        g.over = 0
        last_cvt = {}
        for i, nd in enumerate(nodes):
            if nd.marker is not None:
                if c.stamps and nd.marker in (1, c.NS): E(lambda: g.stamp(f"step{nd.marker}"))
                if c.stamps and nd.marker == c.NS: E(lambda: g.stamp("cyc0", True))
                if c.stamps and nd.marker == c.NT - c.NS:
                    n0 = len(g.out); g.stamp(f"step{nd.marker}"); g.stamp("cyc1", True); g.after_loop = g.out[n0:]; del g.out[n0:]
                g.out.append(f"; STEP {nd.marker}")
            for it in nd.pre: E(lambda: g.do_item(it))
            if nd.needs_P is not None:
                if any(o.item <= nd.needs_P for o in queue):
                    g.out.append(f"; flush item {nd.needs_P}")
                    flush(nd.needs_P)
                lp = max(o.pos for o in g.allops[nd.needs_P])
                while cnt[0] - lp - 1 < 2: E(lambda: g.e("s_nop 0"))
            mp = cnt[0]
            E(lambda: g.e(nd.text))
            if nd.done_half:
                half_pos[nd.done_half] = mp
                if nd.done_half[1] == 0:
                    ops = g.sm_ops(nd.done_half[0]); g.allops[nd.done_half[0]] = ops; queue += ops
            cap = 2; nsh = 0
            for it in nd.shadow:
                if E(lambda: g.do_item(it)): nsh += 1
            if nsh > 1: cap -= nsh - 1
            for it in nd.mem:
                E(lambda: g.do_item(it)); cap -= 2 if it[0] == "vm" else 1
            if cap < 0: g.over += -cap
            while cap > 0:
                pick = None
                rd = [o for o in queue if ready(o)]
                if not rd: break
                if cap == 2:
                    pick = rd[0]
                    if pick.kind == "p":
                        pl = [o for o in rd if o.kind == "p"]
                        es = [o for o in rd if o.kind == "e"]
                        nxt_ok = len(pl) >= 2 or any(o.kind == "p" and o not in rd and all(d.pos is not None or d is pick for d in o.deps) and not any(d.kind == "e" and cnt[0] + 1 - d.pos - 1 < 1 for d in o.deps if d.pos is not None) for o in queue)
                        if not nxt_ok and es: pick = es[0]
                else:
                    pl = [o for o in rd if o.kind == "p"]
                    if not pl: break
                    pick = pl[0]
                place(pick); cap -= 2 if pick.kind == "e" else 1
        assert not queue

    def epilogue(g):
        c = g.c
        g.out.append("; EPILOGUE")
        g.stamp('loopend')
        for u in range(8): g.e(f"v_mov_b32 {vr(V_T+u)}, {vr(V_L+u)}")
        g.e("s_nop 1")
        for u in range(8): g.e(f"v_permlane16_swap_b32 {vr(V_T+u)}, {vr(V_L+u)}")
        for u in range(8): g.e(f"v_add_f32 {vr(V_L+u)}, {vr(V_L+u)}, {vr(V_T+u)}")
        for u in range(8): g.e(f"v_mov_b32 {vr(V_T+u)}, {vr(V_L+u)}")
        g.e("s_nop 1")
        for u in range(8): g.e(f"v_permlane32_swap_b32 {vr(V_T+u)}, {vr(V_L+u)}")
        for u in range(8): g.e(f"v_add_f32 {vr(V_L+u)}, {vr(V_L+u)}, {vr(V_T+u)}")
        if c.fallback:
            lo, hi = f32bits(2.0 ** -30), f32bits(2.0 ** 30)
            for u in range(8): g.e(f"v_subrev_u32 {vr(V_T+u)}, 0x{lo:08x}, {vr(V_L+u)}")
            g.e(f"v_max3_u32 {vr(V_T)}, {vr(V_T)}, {vr(V_T+1)}, {vr(V_T+2)}")
            g.e(f"v_max3_u32 {vr(V_T+3)}, {vr(V_T+3)}, {vr(V_T+4)}, {vr(V_T+5)}")
            g.e(f"v_max3_u32 {vr(V_T)}, {vr(V_T)}, {vr(V_T+6)}, {vr(V_T+7)}")
            g.e(f"v_max_u32 {vr(V_T)}, {vr(V_T)}, {vr(V_T+3)}")
            g.e(f"v_cmp_lt_u32 vcc, 0x{hi-lo:08x}, {vr(V_T)}")
            if c.force_fallback: g.e("s_branch L_fallback")
            else: g.e("s_cbranch_vccnz L_fallback")
        g.e("L_final:")
        for u in range(8): g.e(f"v_rcp_f32 {vr(V_L+u)}, {vr(V_L+u)}")
        blocks = [V_S + 8 * i for i in range(12)]
        bi = 0
        for u in range(8):
            if u: g.e(f"v_add_u32 {vr(V_OOFF)}, 0x1000, {vr(V_OOFF)}")
            ts = []
            for p in range(4):
                t = blocks[bi % len(blocks)]; bi += 1; ts.append(t)
                for i in range(8): g.e(f"v_accvgpr_read_b32 {vr(t+i)}, {ar(Or(u,2*p)+i)}")
            rl = V_L + u
            sel = "op_sel_hi:[1,0]" if rl % 2 == 0 else "op_sel:[0,1] op_sel_hi:[1,1]"
            rp = vr(rl & ~1, 2)
            for t in ts:
                for i in range(0, 8, 2): g.e(f"v_pk_mul_f32 {vr(t+i,2)}, {vr(t+i,2)}, {rp} {sel}")
            for t in ts:
                for i in range(4): g.e(f"v_cvt_pk_bf16_f32 {vr(t+i)}, {vr(t+2*i)}, {vr(t+2*i+1)}")
            g.e("s_nop 1")
            for p, t in enumerate(ts):
                g.e(f"v_permlane16_swap_b32 {vr(t)}, {vr(t+2)}")
                g.e(f"v_permlane16_swap_b32 {vr(t+1)}, {vr(t+3)}")
            for p, t in enumerate(ts):
                off = f" offset:{64*p}" if p else ""
                g.e(f"buffer_store_dwordx4 {vr(t,4)}, {vr(V_OOFF)}, {sr(S_SRDO,4)}, 0 offen{off}{c.store_flags}")
        if c.stamps:
            g.stamp('stissued')
            g.e("s_waitcnt vmcnt(0)")
            g.stamp('stdone')
            g.e("s_waitcnt lgkmcnt(0)")
            g.e("s_mov_b32 s62, 0x1000000\ns_mov_b32 s63, 0x20000")
            g.e(f"s_lshl_b32 s28, s2, 2\ns_add_u32 s28, s28, {sr(S_W)}\ns_lshl_b32 s28, s28, 6")
            g.e("s_getreg_b32 s29, hwreg(HW_REG_XCC_ID)")
            for k in range(11): g.e(f"v_mov_b32 v{8+k}, {sr(S_STAMP+2*k) if k < g.nst else 0}")
            g.e("v_mov_b32 v19, s29")
            g.e("s_mov_b64 exec, 1")
            for k in range(3): g.e(f"buffer_store_dwordx4 v[{8+4*k}:{11+4*k}], off, s[60:63], s28 offset:{16*k}")
            g.e("s_waitcnt vmcnt(0)")
        g.e("L_done:")
        g.e("s_endpgm")

    def fallback(g):
        c = g.c
        base = 2 * c.NS * 8192
        g.e("L_fallback:")
        g.e("s_waitcnt vmcnt(0) lgkmcnt(0)")
        g.e(f"s_lshl_b32 s28, {sr(S_W)}, 14")
        g.e(f"s_add_u32 s28, s28, {base}")
        g.e(f"v_add_u32 {vr(V_KRD)}, s28, {vr(V_KRD)}")
        g.e(f"v_add_u32 {vr(V_VRD)}, s28, {vr(V_VRD)}")
        g.e(f"v_subrev_u32 {vr(V_VRD)}, {c.NS * 8192}, {vr(V_VRD)}")
        for u in range(8):
            g.e(f"v_mov_b32 {vr(V_L+u)}, 0")
            g.e(f"v_mov_b32 {vr(V_M+u)}, 0xff800000")
        for i in range(256): g.e(f"v_accvgpr_write_b32 {ar(i)}, 0")
        g.e(f"s_mov_b32 {sr(S_GOFF)}, 0")
        g.e("L_fb_loop:")
        for isv in (0, 1):
            for kb in range(4):
                for dh in (0, 1):
                    g.e(f"s_add_u32 m0, s28, {isv*8192 + (2*kb+dh)*1024}")
                    g.e(f"s_add_u32 s29, {sr(S_GOFF)}, {kb*2048 + dh*128}")
                    g.e(f"buffer_load_dwordx4 {vr(V_VDMA if isv else V_KDMA)}, {sr(S_SRDV if isv else S_SRDK,4)}, s29 offen lds")
        g.e("s_waitcnt vmcnt(0)")
        for i in range(8):
            kt, kk = i // 4, i % 4
            g.e(f"ds_read_b128 {vr(V_K+4*i,4)}, {vr(V_KRD)} offset:{kt*4096 + (kk//2)*1024 + (kk%2)*512}")
        g.e("s_waitcnt lgkmcnt(0)")
        for dt in range(8):
            for X in (0, 1):
                g.e(f"ds_read_b64_tr_b16 {vr(V_V+4*dt+2*X,2)}, {vr(V_VRD)} offset:{8192 + X*4096 + (dt//4)*1024 + (dt%4)*256}")
            if dt == 3: g.e("s_waitcnt lgkmcnt(0)")
        g.e("s_waitcnt lgkmcnt(0)")
        X = V_S; T = V_T
        for u in range(8):
            for i in range(8):
                kt, kk = i // 4, i % 4
                s = X + 4 * kt
                g.e(f"v_mfma_f32_16x16x32_bf16 {vr(s,4)}, {vr(V_K+4*i,4)}, {vr(Qr(u,kk),4)}, {'0' if kk == 0 else vr(s,4)}")
            g.e("s_nop 7")
            g.e(f"v_max3_f32 {vr(T)}, {vr(X)}, {vr(X+1)}, {vr(X+2)}")
            g.e(f"v_max3_f32 {vr(T)}, {vr(T)}, {vr(X+3)}, {vr(X+4)}")
            g.e(f"v_max3_f32 {vr(T)}, {vr(T)}, {vr(X+5)}, {vr(X+6)}")
            g.e(f"v_max3_f32 {vr(T)}, {vr(T)}, {vr(X+7)}, {vr(V_M+u)}")
            g.e(f"v_mov_b32 {vr(T+1)}, {vr(T)}")
            g.e("s_nop 1")
            g.e(f"v_permlane16_swap_b32 {vr(T+1)}, {vr(T)}")
            g.e(f"v_max_f32 {vr(T)}, {vr(T)}, {vr(T+1)}")
            g.e(f"v_mov_b32 {vr(T+1)}, {vr(T)}")
            g.e("s_nop 1")
            g.e(f"v_permlane32_swap_b32 {vr(T+1)}, {vr(T)}")
            g.e(f"v_max_f32 {vr(T)}, {vr(T)}, {vr(T+1)}")
            g.e(f"v_sub_f32 {vr(T+1)}, {vr(V_M+u)}, {vr(T)}")
            g.e(f"v_exp_f32 {vr(T+1)}, {vr(T+1)}")
            g.e(f"v_mov_b32 {vr(V_M+u)}, {vr(T)}")
            for i in range(8): g.e(f"v_sub_f32 {vr(X+i)}, {vr(X+i)}, {vr(T)}")
            for i in range(8): g.e(f"v_exp_f32 {vr(X+i)}, {vr(X+i)}")
            g.e(f"v_mul_f32 {vr(V_L+u)}, {vr(V_L+u)}, {vr(T+1)}")
            for i in range(8): g.e(f"v_add_f32 {vr(V_L+u)}, {vr(V_L+u)}, {vr(X+i)}")
            for k in range(4): g.e(f"v_cvt_pk_bf16_f32 {vr(X+k)}, {vr(X+2*k)}, {vr(X+2*k+1)}")
            for i0 in range(0, 32, 4):
                for i in range(4): g.e(f"v_accvgpr_read_b32 {vr(X+8+i)}, {ar(Or(u,0)+i0+i)}")
                for i in range(4): g.e(f"v_mul_f32 {vr(X+8+i)}, {vr(X+8+i)}, {vr(T+1)}")
                for i in range(4): g.e(f"v_accvgpr_write_b32 {ar(Or(u,0)+i0+i)}, {vr(X+8+i)}")
            g.e("s_nop 1")
            for dt in range(8):
                o = Or(u, dt)
                g.e(f"v_mfma_f32_16x16x32_bf16 {ar(o,4)}, {vr(V_V+4*dt,4)}, {vr(X,4)}, {ar(o,4)}")
        g.e(f"s_add_u32 {sr(S_GOFF)}, {sr(S_GOFF)}, 8192")
        g.e(f"s_cmp_lt_u32 {sr(S_GOFF)}, {c.NT*8192}")
        g.e("s_cbranch_scc1 L_fb_loop")
        g.e("s_nop 7")
        for u in range(8): g.e(f"v_mov_b32 {vr(V_T+u)}, {vr(V_L+u)}")
        g.e("s_nop 1")
        for u in range(8): g.e(f"v_permlane16_swap_b32 {vr(V_T+u)}, {vr(V_L+u)}")
        for u in range(8): g.e(f"v_add_f32 {vr(V_L+u)}, {vr(V_L+u)}, {vr(V_T+u)}")
        for u in range(8): g.e(f"v_mov_b32 {vr(V_T+u)}, {vr(V_L+u)}")
        g.e("s_nop 1")
        for u in range(8): g.e(f"v_permlane32_swap_b32 {vr(V_T+u)}, {vr(V_L+u)}")
        for u in range(8): g.e(f"v_add_f32 {vr(V_L+u)}, {vr(V_L+u)}, {vr(V_T+u)}")
        g.e("s_branch L_final")

    def fold(g, lin):
        c = g.c
        idx = {}
        for i, x in enumerate(lin):
            m = re.match(r"; STEP (\d+)", x)
            if m: idx[int(m.group(1))] = i
        def seg(a, b): return [x for x in lin[idx[a]:idx[b]] if not x.startswith("; STEP")]
        U = c.NS
        first = U
        nit = (c.NT - 2 * U) // U
        ref = seg(first, first + U)
        for k in range(1, nit):
            assert seg(first + k * U, first + (k + 1) * U) == ref, f"loop iteration {k} differs"
        out = lin[:idx[first]]
        out += [f"s_mov_b32 {sr(S_CNT)}, {nit}", ".p2align 6", "L_loop:"]
        body = list(ref)
        out += body
        out += [f"s_sub_u32 {sr(S_CNT)}, {sr(S_CNT)}, 1", f"s_cmp_lg_u32 {sr(S_CNT)}, 0", "s_cbranch_scc1 L_loop"]
        out += getattr(g, "after_loop", [])
        out += lin[idx[first + nit * U]:]
        return out

    def build(g):
        c = g.c
        g.allops = {}
        g.prologue()
        g.mainloop()
        g.epilogue()
        g.linear = list(g.out)
        body = g.fold(g.out)
        g.out = []
        if c.fallback: g.fallback()
        fb = g.out
        lds = 2 * c.NS * 8192 + (4 * 16384 if c.fallback else 0)
        hdr = open("standalone__mha_softmax__near_ridge.s.ref").read().split("\n")
        head = [x for x in hdr if x.startswith(";") and "@launch" not in x and "Override" not in x and "grid=ceil" not in x and not x.startswith("    ")]
        if c.stamps: head.append("; STAMPS " + " ".join(g.stamp_names))
        txt = "\n".join(head) + f"\n; @launch grid=(256,1,1) block=(256,1,1) lds={lds}\n"
        txt += f""".amdgcn_target "amdgcn-amd-amdhsa--gfx950"
.text
.globl {NAME}
.p2align 8
.type {NAME},@function
{NAME}:
"""
        txt += "\n".join(("" if (x.endswith(":") or x.startswith(".") or x.startswith(";")) else "    ") + x for x in body + fb)
        txt += f"""
.section .rodata,"a"
.p2align 6
.amdhsa_kernel {NAME}
  .amdhsa_next_free_vgpr 512
  .amdhsa_next_free_sgpr 72
  .amdhsa_accum_offset 256
  .amdhsa_group_segment_fixed_size 0
  .amdhsa_kernarg_size 48
  .amdhsa_user_sgpr_count 2
  .amdhsa_user_sgpr_kernarg_segment_ptr 1
  .amdhsa_system_sgpr_workgroup_id_x 1
.end_amdhsa_kernel
"""
        g.fb = fb
        return txt

if __name__ == "__main__":
    cfg = Cfg()
    outp = sys.argv[1]
    for a in sys.argv[2:]:
        k, v = a.split("=")
        cur = getattr(cfg, k)
        setattr(cfg, k, (v == "1") if isinstance(cur, bool) else (int(v) if isinstance(cur, int) else v.replace("+", " ")))
    g = Gen(cfg)
    txt = g.build()
    open(outp, "w").write(txt)
    import subprocess
    r = subprocess.run(["clang", "-x", "assembler", "-target", "amdgcn-amd-amdhsa", "-mcpu=gfx950", "-c", outp, "-o", "x.o"], capture_output=True, text=True)
    assert r.returncode == 0, r.stderr[:800]
    from hazard import check
    n = check(g.linear) + check(g.fb + g.linear[g.linear.index("L_final:"):])
    flushes = [x for x in g.linear if x.startswith("; flush")]
    print(f"wrote {outp}: {len(txt)} bytes, overflow slots={g.over}, flushes={len(flushes)} {flushes[:6]}, hazards={n}")
```

```python
import re, sys, struct, math

class Cfg:
    NS = 4
    L = 3
    NB = 4
    NT = 32
    store_flags = ""
    kv_flags = " nt"
    q_flags = " nt"
    T1POS = 5
    QLA = 3
    stamps = False
    dbgst = False
    no_dma = False
    fallback = True
    force_fallback = False

NAME = "standalone__mha_softmax__near_ridge_kernel"
C_SCALE = math.log2(math.e) / math.sqrt(128.0)
def f32bits(x): return struct.unpack("<I", struct.pack("<f", x))[0]

V_KRD, V_VRD, V_KDMA, V_VDMA, V_QOFF, V_OOFF = 1, 2, 3, 4, 5, 6
V_T = 8
V_S = 16
V_K = 48
V_V = 80
V_L = 112
V_M = 120
V_Q = 128
def Qr(u, kk): return V_Q + u * 16 + kk * 4
def Or(u, dt): return u * 32 + dt * 4
def Sr(b): return V_S + 8 * b
S_SRDQ, S_SRDK, S_SRDV, S_SRDO = 8, 12, 16, 20
S_W, S_GOFF, S_LB, S_CNT = 24, 25, 26, 27
S_C = 30
S_STAMP = 34

def vr(i, n=1): return f"v{i}" if n == 1 else f"v[{i}:{i+n-1}]"
def ar(i, n=1): return f"a{i}" if n == 1 else f"a[{i}:{i+n-1}]"
def sr(i, n=1): return f"s{i}" if n == 1 else f"s[{i}:{i+n-1}]"

class Node:
    def __init__(s, text):
        s.text = text; s.pre = []; s.shadow = []; s.mem = []; s.marker = None
        s.done_half = None
        s.needs_P = None
class Op:
    def __init__(s, text, kind, item, deps=()):
        s.text = text; s.kind = kind; s.item = item; s.deps = list(deps); s.pos = None; s.half = None

class Gen:
    def __init__(g, cfg):
        g.nst = 0; g.stamp_names = []; g.c = cfg; g.out = []; g.lds_q = []; g.vm_q = []; g.vm_seen = set()
    def e(g, t):
        for line in t.split("\n"):
            line = line.strip()
            if line: g.out.append(line)
    def pos(g): return len([x for x in g.out if not x.endswith(":") and not x.startswith(";") and not x.startswith(".")])
    def ds(g, text, tag):
        g.e(text); g.lds_q.append(tag)
    def vm(g, text, tag):
        g.e(text); g.vm_q.append(tag); g.vm_seen.add(tag)
    def wait_lds(g, tag):
        idx = max(i for i, t in enumerate(g.lds_q) if t == tag) if tag in g.lds_q else None
        if idx is None: return False
        n = len(g.lds_q) - 1 - idx
        assert n <= 15
        g.e(f"s_waitcnt lgkmcnt({n})"); g.lds_q = g.lds_q[idx + 1:]
        return True
    def wait_vm(g, tag):
        if tag not in g.vm_q:
            assert tag in g.vm_seen, f"wait on never-issued {tag}"
            return False
        idx = max(i for i, t in enumerate(g.vm_q) if t == tag)
        n = len(g.vm_q) - 1 - idx
        assert n <= 63
        g.e(f"s_waitcnt vmcnt({n})"); g.vm_q = g.vm_q[idx + 1:]
        return True

    def kread(g, j, i):
        kt, kk = i // 4, i % 4
        off = (j % g.c.NS) * 8192 + kt * 4096 + (kk // 2) * 1024 + (kk % 2) * 512
        return (f"ds_read_b128 {vr(V_K + 4 * i, 4)}, {vr(V_KRD)} offset:{off}", ("K", j, i))
    def vread(g, j, dt, X):
        off = (j % g.c.NS) * 8192 + X * 4096 + (dt // 4) * 1024 + (dt % 4) * 256
        return (f"ds_read_b64_tr_b16 {vr(V_V + 4 * dt + 2 * X, 2)}, {vr(V_VRD)} offset:{off}", ("V", j, dt))
    def dma_ops(g, j):
        r = []
        for isv in (0, 1):
            for dh in (0, 1):
                lds = isv * g.c.NS * 8192 + (j % g.c.NS) * 8192 + dh * 1024 - dh * 128
                m0 = f"s_add_u32 m0, {sr(S_LB)}, {lds}"
                off = f" offset:{128 * dh}" if dh else ""
                d = f"buffer_load_dwordx4 {vr(V_VDMA if isv else V_KDMA)}, {sr(S_SRDV if isv else S_SRDK, 4)}, {sr(S_GOFF)} offen{off}{g.c.kv_flags} lds"
                r.append((m0, d))
        return r
    def prescale(g, u):
        r = []
        for k in range(16):
            x = V_Q + u * 16 + k; t = V_T + 2 * (k % 4)
            r.append((f"v_lshlrev_b32 {vr(t)}, 16, {vr(x)}", f"v_and_b32 {vr(t+1)}, 0xffff0000, {vr(x)}",
                      f"v_pk_mul_f32 {vr(t,2)}, {vr(t,2)}, {sr(S_C,2)}", f"v_cvt_pk_bf16_f32 {vr(x)}, {vr(t)}, {vr(t+1)}"))
        out = []
        for k0 in range(0, 16, 4):
            for st in range(4):
                for k in range(k0, k0 + 4): out.append(r[k][st])
        return out
    def stamp(g, name, cyc=False):
        if not g.c.stamps: return
        idx = g.nst; g.nst += 1; assert idx < 11
        g.stamp_names.append(name)
        g.e(f"{'s_memtime' if cyc else 's_memrealtime'} {sr(S_STAMP + 2 * idx, 2)}")

    def prologue(g):
        c = g.c
        g.e("s_cmp_ge_u32 s2, 256")
        g.e("s_cbranch_scc1 L_done")
        g.stamp('start')
        g.e("s_load_dwordx4 s[4:7], s[0:1], 0")
        g.e("s_load_dwordx4 s[56:59], s[0:1], 16")
        if c.stamps: g.e(f"s_load_dwordx2 s[60:61], s[0:1], {32 if c.dbgst else 40}")
        g.e("v_lshrrev_b32 v8, 6, v0")
        g.e("v_and_b32 v0, 63, v0")
        g.e(f"v_readfirstlane_b32 {sr(S_W)}, v8")
        g.e("v_and_b32 v9, 15, v0")
        g.e("v_lshrrev_b32 v10, 4, v0")
        g.e("v_and_b32 v11, 7, v9")
        g.e("v_lshrrev_b32 v12, 2, v11")
        g.e("v_lshlrev_b32 v12, 1, v12")
        g.e("v_xor_b32 v12, v12, v10")
        g.e("v_lshl_add_u32 v12, v11, 2, v12")
        g.e("v_lshlrev_b32 v12, 4, v12")
        g.e("v_lshrrev_b32 v13, 3, v9")
        g.e(f"v_lshl_add_u32 {vr(V_KRD)}, v13, 11, v12")
        g.e("v_and_b32 v12, 31, v0")
        g.e("v_lshlrev_b32 v12, 3, v12")
        g.e("v_lshrrev_b32 v13, 5, v0")
        g.e(f"v_lshl_add_u32 {vr(V_VRD)}, v13, 11, v12")
        g.e(f"v_add_u32 {vr(V_VRD)}, {c.NS * 8192}, {vr(V_VRD)}")
        g.e("v_bfe_u32 v11, v0, 2, 3")
        g.e("v_lshrrev_b32 v12, 2, v11")
        g.e("v_lshlrev_b32 v12, 1, v12")
        g.e("v_and_b32 v14, 3, v0")
        g.e("v_xor_b32 v12, v12, v14")
        g.e("v_lshlrev_b32 v12, 4, v12")
        g.e("v_lshl_add_u32 v12, v13, 6, v12")
        g.e(f"v_lshl_add_u32 {vr(V_KDMA)}, v11, 8, v12")
        g.e("v_bfe_u32 v11, v0, 1, 3")
        g.e("v_and_b32 v12, 1, v0")
        g.e("v_lshlrev_b32 v12, 4, v12")
        g.e("v_lshl_add_u32 v12, v10, 5, v12")
        g.e(f"v_lshl_add_u32 {vr(V_VDMA)}, v11, 8, v12")
        g.e(f"s_lshl_b32 s28, {sr(S_W)}, 15")
        g.e("v_lshlrev_b32 v12, 8, v9")
        g.e("v_add_u32 v12, s28, v12")
        g.e(f"v_lshl_add_u32 {vr(V_QOFF)}, v10, 4, v12")
        g.e("v_and_b32 v14, 1, v10")
        g.e("v_lshl_add_u32 v12, v14, 5, v12")
        g.e(f"v_lshl_add_u32 {vr(V_OOFF)}, v13, 4, v12")
        g.e(f"s_lshl_b32 {sr(S_LB)}, {sr(S_W)}, 11")
        g.e(f"s_mov_b32 {sr(S_GOFF)}, {sr(S_LB)}")
        g.e(f"s_mov_b32 {sr(S_C)}, 0x{f32bits(C_SCALE):08x}")
        g.e(f"s_mov_b32 {sr(S_C+1)}, 0x{f32bits(C_SCALE):08x}")
        g.e("s_mul_i32 s28, s2, 126976")
        g.e("s_lshl_b32 s29, s2, 18")
        g.e("s_waitcnt lgkmcnt(0)")
        for srd, lo, hi, offs, size in ((S_SRDK, 6, 7, 29, 262144), (S_SRDQ, 4, 5, 28, 126976), (S_SRDV, 56, 57, 29, 262144), (S_SRDO, 58, 59, 28, 126976)):
            g.e(f"s_add_u32 {sr(srd)}, s{lo}, s{offs}")
            g.e(f"s_addc_u32 {sr(srd+1)}, s{hi}, 0")
            g.e(f"s_mov_b32 {sr(srd+2)}, {size}")
            g.e(f"s_mov_b32 {sr(srd+3)}, 0x20000")
        def dma(j, sel):
            ops = g.dma_ops(j)
            for k in sel:
                g.e(ops[k][0]); g.e("s_nop 0"); g.vm(ops[k][1], ("T", j))
        def qload(u):
            if u: g.e(f"v_add_u32 {vr(V_QOFF)}, 0x1000, {vr(V_QOFF)}")
            for kk in range(4):
                off = f" offset:{64*kk}" if kk else ""
                g.vm(f"buffer_load_dwordx4 {vr(Qr(u,kk),4)}, {vr(V_QOFF)}, {sr(S_SRDQ,4)}, 0 offen{off}{c.q_flags}", ("Q", u))
        def tile(j):
            dma(j, (0, 1, 2, 3))
            g.e(f"s_add_u32 {sr(S_GOFF)}, {sr(S_GOFF)}, 8192")
        dma(0, (0, 1)); g.vm_q[-1] = ("TK", 0); qload(0); dma(0, (2, 3))
        g.e(f"s_add_u32 {sr(S_GOFF)}, {sr(S_GOFF)}, 8192")
        later = [(lambda u=u: qload(u)) for u in range(1, 8)] + [(lambda j=j: tile(j)) for j in range(2, c.NS)]
        later.insert(c.T1POS, lambda: tile(1))
        for k in range(c.QLA - 1): later.pop(0)()
        g.later = later
        for u in range(8): g.e(f"v_mov_b32 {vr(V_L+u)}, 0")
        g.stamp('issued')
        g.wait_vm(("T", 0))
        g.stamp('T0')
        g.e("s_barrier")
        if c.stamps: g.e("s_waitcnt lgkmcnt(0)")
        for i in range(8): g.ds(*g.kread(0, i))
        for dt in range(8):
            for X in (0, 1): g.ds(*g.vread(0, dt, X))
            if dt == 2: g.wait_lds(("K", 0, 7))

    def build_nodes(g):
        c = g.c; NI = c.NT * 8
        nodes = []
        def qk(n):
            j, u = divmod(n, 8); b = n % c.NB; r = []
            for i in range(8):
                kt, kk = i // 4, i % 4
                s = Sr(b) + 4 * kt
                cc = "0" if kk == 0 else vr(s, 4)
                nd = Node(f"v_mfma_f32_16x16x32_bf16 {vr(s,4)}, {vr(V_K+4*i,4)}, {vr(Qr(u,kk),4)}, {cc}")
                nd.wait = ("L", ("K", j, i)) if u == 0 else None
                if kk == 3: nd.done_half = (n, kt)
                if u == 7 and j + 1 < c.NT and i % 2 == 1:
                    nd.mem.append(("ds",) + g.kread(j + 1, i - 1)); nd.mem.append(("ds",) + g.kread(j + 1, i))
                r.append(nd)
            if u == 0: r[0].marker = j
            if j == 0: r[0].pre = [("later",), ("waitvm", ("Q", u))] + [("e", t) for t in g.prescale(u)]
            if j == 0 and u == 7: r[0].pre += [("later",)] * 8
            return r
        def pv(n):
            j, u = divmod(n, 8); b = n % c.NB; r = []
            for dt in range(8):
                o = Or(u, dt)
                cc = "0" if j == 0 else ar(o, 4)
                nd = Node(f"v_mfma_f32_16x16x32_bf16 {ar(o,4)}, {vr(V_V+4*dt,4)}, {vr(Sr(b),4)}, {cc}")
                nd.wait = ("L", ("V", j, dt)) if u == 0 else None
                nd.needs_P = n
                if u == 7 and j + 1 < c.NT:
                    for X in (0, 1): nd.mem.append(("ds",) + g.vread(j + 1, dt, X))
                r.append(nd)
            return r
        for n in range(NI + c.L):
            pair = []
            if n < NI: pair += qk(n)
            if n >= c.L: pair += pv(n - c.L)
            if n < NI:
                j, u = divmod(n, 8)
                if u == (7 if j == 0 else c.L + 1):
                    if j + 1 < c.NT:
                        pair[0].shadow.append(("waitvm", ("T", j + 1)))
                        pair[1].shadow.append(("e", "s_barrier"))
                    if j + c.NS < c.NT and not c.no_dma:
                        pair[14].shadow.append(("e", f"s_add_u32 {sr(S_GOFF)}, {sr(S_GOFF)}, 8192"))
                        if c.NT > 32: pair[2].shadow.append(("e", f"s_and_b32 {sr(S_GOFF)}, {sr(S_GOFF)}, 0x3ffff"))
                        for k, (m0, d) in enumerate(g.dma_ops(j + c.NS)):
                            pair[3 + 3 * k].shadow.append(("e", m0))
                            pair[4 + 3 * k].mem.append(("vm", d, ("T", j + c.NS)))
            nodes += pair
        for i, nd in enumerate(nodes):
            w = getattr(nd, "wait", None)
            if w:
                if i == 0 or nd.pre: nd.pre.append(("waitlds", w[1]))
                else: nodes[i - 1].shadow.append(("waitlds", w[1]))
        return nodes

    def sm_ops(g, n):
        c = g.c; u = n % 8; X = Sr(n % c.NB); l = V_L + u
        ops = []
        ex = [Op(f"v_exp_f32 {vr(X+i)}, {vr(X+i)}", "e", n) for i in range(8)]
        for i in range(8): ex[i].half = i // 4
        ad = [Op(f"v_add_f32 {vr(l)}, {vr(l)}, {vr(X+i)}", "p", n, [ex[i]]) for i in range(8)]
        cv = []
        for k in range(4):
            deps = [ex[2*k], ex[2*k+1], ad[k]] + ([cv[k // 2]] if k > 0 else [])
            cv.append(Op(f"v_cvt_pk_bf16_f32 {vr(X+k)}, {vr(X+2*k)}, {vr(X+2*k+1)}", "p", n, deps))
        order = [ex[0], ex[1], ad[0], ad[1], ex[2], ex[3], cv[0], ad[2], ex[4], ad[3], cv[1], ex[5], ad[4], ad[5], ex[6], ex[7], cv[2], ad[6], ad[7], cv[3]]
        return order

    def do_item(g, it):
        k = it[0]
        if k == "e": g.e(it[1])
        elif k == "waitvm": return g.wait_vm(it[1])
        elif k == "waitlds": return g.wait_lds(it[1])
        elif k == "ds": g.ds(it[1], it[2])
        elif k == "vm": g.vm(it[1], it[2])
        elif k == "later":
            if g.later: g.later.pop(0)()
        return True

    def mainloop(g):
        c = g.c
        nodes = g.build_nodes()
        queue = []
        half_pos = {}
        cnt = [g.pos()]
        def E(fn):
            n0 = len(g.out); r = fn(); cnt[0] += len(g.out) - n0; return r
        def ready(op):
            if op.kind == "e":
                p = half_pos.get((op.item, op.half))
                return p is not None and cnt[0] - p - 1 >= 8
            for d in op.deps:
                if d.pos is None: return False
                if d.kind == "e" and cnt[0] - d.pos - 1 < 1: return False
            return True
        def place(op):
            op.pos = cnt[0]; E(lambda: g.e(op.text)); queue.remove(op)
        def flush(item):
            while any(o.item <= item for o in queue):
                for o in queue:
                    if o.item <= item and ready(o): place(o); break
                else: E(lambda: g.e("s_nop 0"))
        g.over = 0
        last_cvt = {}
        for i, nd in enumerate(nodes):
            if nd.marker is not None:
                if c.stamps and nd.marker in (1, c.NS): E(lambda: g.stamp(f"step{nd.marker}"))
                if c.stamps and nd.marker == c.NS: E(lambda: g.stamp("cyc0", True))
                if c.stamps and nd.marker == c.NT - c.NS:
                    n0 = len(g.out); g.stamp(f"step{nd.marker}"); g.stamp("cyc1", True); g.after_loop = g.out[n0:]; del g.out[n0:]
                g.out.append(f"; STEP {nd.marker}")
            for it in nd.pre: E(lambda: g.do_item(it))
            if nd.needs_P is not None:
                if any(o.item <= nd.needs_P for o in queue):
                    g.out.append(f"; flush item {nd.needs_P}")
                    flush(nd.needs_P)
                lp = max(o.pos for o in g.allops[nd.needs_P])
                while cnt[0] - lp - 1 < 2: E(lambda: g.e("s_nop 0"))
            mp = cnt[0]
            E(lambda: g.e(nd.text))
            if nd.done_half:
                half_pos[nd.done_half] = mp
                if nd.done_half[1] == 0:
                    ops = g.sm_ops(nd.done_half[0]); g.allops[nd.done_half[0]] = ops; queue += ops
            cap = 2; nsh = 0
            for it in nd.shadow:
                if E(lambda: g.do_item(it)): nsh += 1
            if nsh > 1: cap -= nsh - 1
            for it in nd.mem:
                E(lambda: g.do_item(it)); cap -= 2 if it[0] == "vm" else 1
            if cap < 0: g.over += -cap
            while cap > 0:
                pick = None
                rd = [o for o in queue if ready(o)]
                if not rd: break
                if cap == 2:
                    pick = rd[0]
                    if pick.kind == "p":
                        pl = [o for o in rd if o.kind == "p"]
                        es = [o for o in rd if o.kind == "e"]
                        nxt_ok = len(pl) >= 2 or any(o.kind == "p" and o not in rd and all(d.pos is not None or d is pick for d in o.deps) and not any(d.kind == "e" and cnt[0] + 1 - d.pos - 1 < 1 for d in o.deps if d.pos is not None) for o in queue)
                        if not nxt_ok and es: pick = es[0]
                else:
                    pl = [o for o in rd if o.kind == "p"]
                    if not pl: break
                    pick = pl[0]
                place(pick); cap -= 2 if pick.kind == "e" else 1
        assert not queue

    def epilogue(g):
        c = g.c
        g.out.append("; EPILOGUE")
        g.stamp('loopend')
        for u in range(8): g.e(f"v_mov_b32 {vr(V_T+u)}, {vr(V_L+u)}")
        g.e("s_nop 1")
        for u in range(8): g.e(f"v_permlane16_swap_b32 {vr(V_T+u)}, {vr(V_L+u)}")
        for u in range(8): g.e(f"v_add_f32 {vr(V_L+u)}, {vr(V_L+u)}, {vr(V_T+u)}")
        for u in range(8): g.e(f"v_mov_b32 {vr(V_T+u)}, {vr(V_L+u)}")
        g.e("s_nop 1")
        for u in range(8): g.e(f"v_permlane32_swap_b32 {vr(V_T+u)}, {vr(V_L+u)}")
        for u in range(8): g.e(f"v_add_f32 {vr(V_L+u)}, {vr(V_L+u)}, {vr(V_T+u)}")
        if c.fallback:
            lo, hi = f32bits(2.0 ** -30), f32bits(2.0 ** 30)
            for u in range(8): g.e(f"v_subrev_u32 {vr(V_T+u)}, 0x{lo:08x}, {vr(V_L+u)}")
            g.e(f"v_max3_u32 {vr(V_T)}, {vr(V_T)}, {vr(V_T+1)}, {vr(V_T+2)}")
            g.e(f"v_max3_u32 {vr(V_T+3)}, {vr(V_T+3)}, {vr(V_T+4)}, {vr(V_T+5)}")
            g.e(f"v_max3_u32 {vr(V_T)}, {vr(V_T)}, {vr(V_T+6)}, {vr(V_T+7)}")
            g.e(f"v_max_u32 {vr(V_T)}, {vr(V_T)}, {vr(V_T+3)}")
            g.e(f"v_cmp_lt_u32 vcc, 0x{hi-lo:08x}, {vr(V_T)}")
            if c.force_fallback: g.e("s_branch L_fallback")
            else: g.e("s_cbranch_vccnz L_fallback")
        g.e("L_final:")
        for u in range(8): g.e(f"v_rcp_f32 {vr(V_L+u)}, {vr(V_L+u)}")
        blocks = [V_S + 8 * i for i in range(12)]
        bi = 0
        for u in range(8):
            if u: g.e(f"v_add_u32 {vr(V_OOFF)}, 0x1000, {vr(V_OOFF)}")
            ts = []
            for p in range(4):
                t = blocks[bi % len(blocks)]; bi += 1; ts.append(t)
                for i in range(8): g.e(f"v_accvgpr_read_b32 {vr(t+i)}, {ar(Or(u,2*p)+i)}")
            rl = V_L + u
            sel = "op_sel_hi:[1,0]" if rl % 2 == 0 else "op_sel:[0,1] op_sel_hi:[1,1]"
            rp = vr(rl & ~1, 2)
            for t in ts:
                for i in range(0, 8, 2): g.e(f"v_pk_mul_f32 {vr(t+i,2)}, {vr(t+i,2)}, {rp} {sel}")
            for t in ts:
                for i in range(4): g.e(f"v_cvt_pk_bf16_f32 {vr(t+i)}, {vr(t+2*i)}, {vr(t+2*i+1)}")
            g.e("s_nop 1")
            for p, t in enumerate(ts):
                g.e(f"v_permlane16_swap_b32 {vr(t)}, {vr(t+2)}")
                g.e(f"v_permlane16_swap_b32 {vr(t+1)}, {vr(t+3)}")
            for p, t in enumerate(ts):
                off = f" offset:{64*p}" if p else ""
                g.e(f"buffer_store_dwordx4 {vr(t,4)}, {vr(V_OOFF)}, {sr(S_SRDO,4)}, 0 offen{off}{c.store_flags}")
        if c.stamps:
            g.stamp('stissued')
            g.e("s_waitcnt vmcnt(0)")
            g.stamp('stdone')
            g.e("s_waitcnt lgkmcnt(0)")
            g.e("s_mov_b32 s62, 0x1000000\ns_mov_b32 s63, 0x20000")
            g.e(f"s_lshl_b32 s28, s2, 2\ns_add_u32 s28, s28, {sr(S_W)}\ns_lshl_b32 s28, s28, 6")
            g.e("s_getreg_b32 s29, hwreg(HW_REG_XCC_ID)")
            for k in range(11): g.e(f"v_mov_b32 v{8+k}, {sr(S_STAMP+2*k) if k < g.nst else 0}")
            g.e("v_mov_b32 v19, s29")
            g.e("s_mov_b64 exec, 1")
            if c.dbgst:
                g.e("s_mov_b32 s62, 256")
                g.e("v_not_b32 v20, v8")
                g.e("buffer_atomic_umax v20, off, s[60:63], 0 offset:60")
                for k in range(g.nst): g.e(f"buffer_atomic_umax v{8+k}, off, s[60:63], 0 offset:{4*k}")
            else:
                for k in range(3): g.e(f"buffer_store_dwordx4 v[{8+4*k}:{11+4*k}], off, s[60:63], s28 offset:{16*k}")
            g.e("s_waitcnt vmcnt(0)")
        g.e("L_done:")
        g.e("s_endpgm")

    def fallback(g):
        c = g.c
        base = 2 * c.NS * 8192
        g.e("L_fallback:")
        g.e("s_waitcnt vmcnt(0) lgkmcnt(0)")
        g.e(f"s_lshl_b32 s28, {sr(S_W)}, 14")
        g.e(f"s_add_u32 s28, s28, {base}")
        g.e(f"v_add_u32 {vr(V_KRD)}, s28, {vr(V_KRD)}")
        g.e(f"v_add_u32 {vr(V_VRD)}, s28, {vr(V_VRD)}")
        g.e(f"v_subrev_u32 {vr(V_VRD)}, {c.NS * 8192}, {vr(V_VRD)}")
        for u in range(8):
            g.e(f"v_mov_b32 {vr(V_L+u)}, 0")
            g.e(f"v_mov_b32 {vr(V_M+u)}, 0xff800000")
        for i in range(256): g.e(f"v_accvgpr_write_b32 {ar(i)}, 0")
        g.e(f"s_mov_b32 {sr(S_GOFF)}, 0")
        g.e("L_fb_loop:")
        for isv in (0, 1):
            for kb in range(4):
                for dh in (0, 1):
                    g.e(f"s_add_u32 m0, s28, {isv*8192 + (2*kb+dh)*1024}")
                    g.e(f"s_add_u32 s29, {sr(S_GOFF)}, {kb*2048 + dh*128}")
                    g.e(f"buffer_load_dwordx4 {vr(V_VDMA if isv else V_KDMA)}, {sr(S_SRDV if isv else S_SRDK,4)}, s29 offen lds")
        g.e("s_waitcnt vmcnt(0)")
        for i in range(8):
            kt, kk = i // 4, i % 4
            g.e(f"ds_read_b128 {vr(V_K+4*i,4)}, {vr(V_KRD)} offset:{kt*4096 + (kk//2)*1024 + (kk%2)*512}")
        g.e("s_waitcnt lgkmcnt(0)")
        for dt in range(8):
            for X in (0, 1):
                g.e(f"ds_read_b64_tr_b16 {vr(V_V+4*dt+2*X,2)}, {vr(V_VRD)} offset:{8192 + X*4096 + (dt//4)*1024 + (dt%4)*256}")
            if dt == 3: g.e("s_waitcnt lgkmcnt(0)")
        g.e("s_waitcnt lgkmcnt(0)")
        X = V_S; T = V_T
        for u in range(8):
            for i in range(8):
                kt, kk = i // 4, i % 4
                s = X + 4 * kt
                g.e(f"v_mfma_f32_16x16x32_bf16 {vr(s,4)}, {vr(V_K+4*i,4)}, {vr(Qr(u,kk),4)}, {'0' if kk == 0 else vr(s,4)}")
            g.e("s_nop 7")
            g.e(f"v_max3_f32 {vr(T)}, {vr(X)}, {vr(X+1)}, {vr(X+2)}")
            g.e(f"v_max3_f32 {vr(T)}, {vr(T)}, {vr(X+3)}, {vr(X+4)}")
            g.e(f"v_max3_f32 {vr(T)}, {vr(T)}, {vr(X+5)}, {vr(X+6)}")
            g.e(f"v_max3_f32 {vr(T)}, {vr(T)}, {vr(X+7)}, {vr(V_M+u)}")
            g.e(f"v_mov_b32 {vr(T+1)}, {vr(T)}")
            g.e("s_nop 1")
            g.e(f"v_permlane16_swap_b32 {vr(T+1)}, {vr(T)}")
            g.e(f"v_max_f32 {vr(T)}, {vr(T)}, {vr(T+1)}")
            g.e(f"v_mov_b32 {vr(T+1)}, {vr(T)}")
            g.e("s_nop 1")
            g.e(f"v_permlane32_swap_b32 {vr(T+1)}, {vr(T)}")
            g.e(f"v_max_f32 {vr(T)}, {vr(T)}, {vr(T+1)}")
            g.e(f"v_sub_f32 {vr(T+1)}, {vr(V_M+u)}, {vr(T)}")
            g.e(f"v_exp_f32 {vr(T+1)}, {vr(T+1)}")
            g.e(f"v_mov_b32 {vr(V_M+u)}, {vr(T)}")
            for i in range(8): g.e(f"v_sub_f32 {vr(X+i)}, {vr(X+i)}, {vr(T)}")
            for i in range(8): g.e(f"v_exp_f32 {vr(X+i)}, {vr(X+i)}")
            g.e(f"v_mul_f32 {vr(V_L+u)}, {vr(V_L+u)}, {vr(T+1)}")
            for i in range(8): g.e(f"v_add_f32 {vr(V_L+u)}, {vr(V_L+u)}, {vr(X+i)}")
            for k in range(4): g.e(f"v_cvt_pk_bf16_f32 {vr(X+k)}, {vr(X+2*k)}, {vr(X+2*k+1)}")
            for i0 in range(0, 32, 4):
                for i in range(4): g.e(f"v_accvgpr_read_b32 {vr(X+8+i)}, {ar(Or(u,0)+i0+i)}")
                for i in range(4): g.e(f"v_mul_f32 {vr(X+8+i)}, {vr(X+8+i)}, {vr(T+1)}")
                for i in range(4): g.e(f"v_accvgpr_write_b32 {ar(Or(u,0)+i0+i)}, {vr(X+8+i)}")
            g.e("s_nop 1")
            for dt in range(8):
                o = Or(u, dt)
                g.e(f"v_mfma_f32_16x16x32_bf16 {ar(o,4)}, {vr(V_V+4*dt,4)}, {vr(X,4)}, {ar(o,4)}")
        g.e(f"s_add_u32 {sr(S_GOFF)}, {sr(S_GOFF)}, 8192")
        g.e(f"s_cmp_lt_u32 {sr(S_GOFF)}, {c.NT*8192}")
        g.e("s_cbranch_scc1 L_fb_loop")
        g.e("s_nop 7")
        for u in range(8): g.e(f"v_mov_b32 {vr(V_T+u)}, {vr(V_L+u)}")
        g.e("s_nop 1")
        for u in range(8): g.e(f"v_permlane16_swap_b32 {vr(V_T+u)}, {vr(V_L+u)}")
        for u in range(8): g.e(f"v_add_f32 {vr(V_L+u)}, {vr(V_L+u)}, {vr(V_T+u)}")
        for u in range(8): g.e(f"v_mov_b32 {vr(V_T+u)}, {vr(V_L+u)}")
        g.e("s_nop 1")
        for u in range(8): g.e(f"v_permlane32_swap_b32 {vr(V_T+u)}, {vr(V_L+u)}")
        for u in range(8): g.e(f"v_add_f32 {vr(V_L+u)}, {vr(V_L+u)}, {vr(V_T+u)}")
        g.e("s_branch L_final")

    def fold(g, lin):
        c = g.c
        idx = {}
        for i, x in enumerate(lin):
            m = re.match(r"; STEP (\d+)", x)
            if m: idx[int(m.group(1))] = i
        def seg(a, b): return [x for x in lin[idx[a]:idx[b]] if not x.startswith("; STEP")]
        U = c.NS
        first = U
        nit = (c.NT - 2 * U) // U
        ref = seg(first, first + U)
        for k in range(1, nit):
            assert seg(first + k * U, first + (k + 1) * U) == ref, f"loop iteration {k} differs"
        out = lin[:idx[first]]
        out += [f"s_mov_b32 {sr(S_CNT)}, {nit}", ".p2align 6", "L_loop:"]
        body = list(ref)
        out += body
        out += [f"s_sub_u32 {sr(S_CNT)}, {sr(S_CNT)}, 1", f"s_cmp_lg_u32 {sr(S_CNT)}, 0", "s_cbranch_scc1 L_loop"]
        out += getattr(g, "after_loop", [])
        out += lin[idx[first + nit * U]:]
        return out

    def build(g):
        c = g.c
        g.allops = {}
        g.prologue()
        g.mainloop()
        g.epilogue()
        g.linear = list(g.out)
        body = g.fold(g.out)
        g.out = []
        if c.fallback: g.fallback()
        fb = g.out
        lds = 2 * c.NS * 8192 + (4 * 16384 if c.fallback else 0)
        hdr = open("standalone__mha_softmax__near_ridge.s.ref").read().split("\n")
        head = [x for x in hdr if x.startswith(";") and "@launch" not in x and "Override" not in x and "grid=ceil" not in x and not x.startswith("    ")]
        if c.stamps: head.append("; STAMPS " + " ".join(g.stamp_names))
        txt = "\n".join(head) + f"\n; @launch grid=(256,1,1) block=(256,1,1) lds={lds}\n"
        txt += f""".amdgcn_target "amdgcn-amd-amdhsa--gfx950"
.text
.globl {NAME}
.p2align 8
.type {NAME},@function
{NAME}:
"""
        txt += "\n".join(("" if (x.endswith(":") or x.startswith(".") or x.startswith(";")) else "    ") + x for x in body + fb)
        txt += f"""
.section .rodata,"a"
.p2align 6
.amdhsa_kernel {NAME}
  .amdhsa_next_free_vgpr 512
  .amdhsa_next_free_sgpr 72
  .amdhsa_accum_offset 256
  .amdhsa_group_segment_fixed_size 0
  .amdhsa_kernarg_size 48
  .amdhsa_user_sgpr_count 2
  .amdhsa_user_sgpr_kernarg_segment_ptr 1
  .amdhsa_system_sgpr_workgroup_id_x 1
.end_amdhsa_kernel
"""
        g.fb = fb
        return txt

if __name__ == "__main__":
    cfg = Cfg()
    outp = sys.argv[1]
    for a in sys.argv[2:]:
        k, v = a.split("=")
        cur = getattr(cfg, k)
        setattr(cfg, k, (v == "1") if isinstance(cur, bool) else (int(v) if isinstance(cur, int) else v.replace("+", " ")))
    g = Gen(cfg)
    txt = g.build()
    open(outp, "w").write(txt)
    import subprocess
    r = subprocess.run(["clang", "-x", "assembler", "-target", "amdgcn-amd-amdhsa", "-mcpu=gfx950", "-c", outp, "-o", "x.o"], capture_output=True, text=True)
    assert r.returncode == 0, r.stderr[:800]
    from hazard import check
    n = check(g.linear) + check(g.fb + g.linear[g.linear.index("L_final:"):])
    flushes = [x for x in g.linear if x.startswith("; flush")]
    print(f"wrote {outp}: {len(txt)} bytes, overflow slots={g.over}, flushes={len(flushes)} {flushes[:6]}, hazards={n}")
```

```python
import re, sys, struct, math

class Cfg:
    NS = 4
    L = 3
    NB = 4
    NT = 32
    store_flags = ""
    kv_flags = " nt"
    q_flags = " nt"
    T1POS = 5
    QLA = 3
    stamps = False
    xstore = 0
    nostore = False
    dbgst = False
    no_dma = False
    fallback = True
    force_fallback = False

NAME = "standalone__mha_softmax__near_ridge_kernel"
C_SCALE = math.log2(math.e) / math.sqrt(128.0)
def f32bits(x): return struct.unpack("<I", struct.pack("<f", x))[0]

V_KRD, V_VRD, V_KDMA, V_VDMA, V_QOFF, V_OOFF = 1, 2, 3, 4, 5, 6
V_T = 8
V_S = 16
V_K = 48
V_V = 80
V_L = 112
V_M = 120
V_Q = 128
def Qr(u, kk): return V_Q + u * 16 + kk * 4
def Or(u, dt): return u * 32 + dt * 4
def Sr(b): return V_S + 8 * b
S_SRDQ, S_SRDK, S_SRDV, S_SRDO = 8, 12, 16, 20
S_W, S_GOFF, S_LB, S_CNT = 24, 25, 26, 27
S_C = 30
S_STAMP = 34

def vr(i, n=1): return f"v{i}" if n == 1 else f"v[{i}:{i+n-1}]"
def ar(i, n=1): return f"a{i}" if n == 1 else f"a[{i}:{i+n-1}]"
def sr(i, n=1): return f"s{i}" if n == 1 else f"s[{i}:{i+n-1}]"

class Node:
    def __init__(s, text):
        s.text = text; s.pre = []; s.shadow = []; s.mem = []; s.marker = None
        s.done_half = None
        s.needs_P = None
class Op:
    def __init__(s, text, kind, item, deps=()):
        s.text = text; s.kind = kind; s.item = item; s.deps = list(deps); s.pos = None; s.half = None

class Gen:
    def __init__(g, cfg):
        g.nst = 0; g.stamp_names = []; g.c = cfg; g.out = []; g.lds_q = []; g.vm_q = []; g.vm_seen = set()
    def e(g, t):
        for line in t.split("\n"):
            line = line.strip()
            if line: g.out.append(line)
    def pos(g): return len([x for x in g.out if not x.endswith(":") and not x.startswith(";") and not x.startswith(".")])
    def ds(g, text, tag):
        g.e(text); g.lds_q.append(tag)
    def vm(g, text, tag):
        g.e(text); g.vm_q.append(tag); g.vm_seen.add(tag)
    def wait_lds(g, tag):
        idx = max(i for i, t in enumerate(g.lds_q) if t == tag) if tag in g.lds_q else None
        if idx is None: return False
        n = len(g.lds_q) - 1 - idx
        assert n <= 15
        g.e(f"s_waitcnt lgkmcnt({n})"); g.lds_q = g.lds_q[idx + 1:]
        return True
    def wait_vm(g, tag):
        if tag not in g.vm_q:
            assert tag in g.vm_seen, f"wait on never-issued {tag}"
            return False
        idx = max(i for i, t in enumerate(g.vm_q) if t == tag)
        n = len(g.vm_q) - 1 - idx
        assert n <= 63
        g.e(f"s_waitcnt vmcnt({n})"); g.vm_q = g.vm_q[idx + 1:]
        return True

    def kread(g, j, i):
        kt, kk = i // 4, i % 4
        off = (j % g.c.NS) * 8192 + kt * 4096 + (kk // 2) * 1024 + (kk % 2) * 512
        return (f"ds_read_b128 {vr(V_K + 4 * i, 4)}, {vr(V_KRD)} offset:{off}", ("K", j, i))
    def vread(g, j, dt, X):
        off = (j % g.c.NS) * 8192 + X * 4096 + (dt // 4) * 1024 + (dt % 4) * 256
        return (f"ds_read_b64_tr_b16 {vr(V_V + 4 * dt + 2 * X, 2)}, {vr(V_VRD)} offset:{off}", ("V", j, dt))
    def dma_ops(g, j):
        r = []
        for isv in (0, 1):
            for dh in (0, 1):
                lds = isv * g.c.NS * 8192 + (j % g.c.NS) * 8192 + dh * 1024 - dh * 128
                m0 = f"s_add_u32 m0, {sr(S_LB)}, {lds}"
                off = f" offset:{128 * dh}" if dh else ""
                d = f"buffer_load_dwordx4 {vr(V_VDMA if isv else V_KDMA)}, {sr(S_SRDV if isv else S_SRDK, 4)}, {sr(S_GOFF)} offen{off}{g.c.kv_flags} lds"
                r.append((m0, d))
        return r
    def prescale(g, u):
        r = []
        for k in range(16):
            x = V_Q + u * 16 + k; t = V_T + 2 * (k % 4)
            r.append((f"v_lshlrev_b32 {vr(t)}, 16, {vr(x)}", f"v_and_b32 {vr(t+1)}, 0xffff0000, {vr(x)}",
                      f"v_pk_mul_f32 {vr(t,2)}, {vr(t,2)}, {sr(S_C,2)}", f"v_cvt_pk_bf16_f32 {vr(x)}, {vr(t)}, {vr(t+1)}"))
        out = []
        for k0 in range(0, 16, 4):
            for st in range(4):
                for k in range(k0, k0 + 4): out.append(r[k][st])
        return out
    def stamp(g, name, cyc=False):
        if not g.c.stamps: return
        idx = g.nst; g.nst += 1; assert idx < 11
        g.stamp_names.append(name)
        g.e(f"{'s_memtime' if cyc else 's_memrealtime'} {sr(S_STAMP + 2 * idx, 2)}")

    def prologue(g):
        c = g.c
        g.e("s_cmp_ge_u32 s2, 256")
        g.e("s_cbranch_scc1 L_done")
        g.stamp('start')
        g.e("s_load_dwordx4 s[4:7], s[0:1], 0")
        g.e("s_load_dwordx4 s[56:59], s[0:1], 16")
        if c.stamps: g.e(f"s_load_dwordx2 s[60:61], s[0:1], {32 if c.dbgst else 40}")
        g.e("v_lshrrev_b32 v8, 6, v0")
        g.e("v_and_b32 v0, 63, v0")
        g.e(f"v_readfirstlane_b32 {sr(S_W)}, v8")
        g.e("v_and_b32 v9, 15, v0")
        g.e("v_lshrrev_b32 v10, 4, v0")
        g.e("v_and_b32 v11, 7, v9")
        g.e("v_lshrrev_b32 v12, 2, v11")
        g.e("v_lshlrev_b32 v12, 1, v12")
        g.e("v_xor_b32 v12, v12, v10")
        g.e("v_lshl_add_u32 v12, v11, 2, v12")
        g.e("v_lshlrev_b32 v12, 4, v12")
        g.e("v_lshrrev_b32 v13, 3, v9")
        g.e(f"v_lshl_add_u32 {vr(V_KRD)}, v13, 11, v12")
        g.e("v_and_b32 v12, 31, v0")
        g.e("v_lshlrev_b32 v12, 3, v12")
        g.e("v_lshrrev_b32 v13, 5, v0")
        g.e(f"v_lshl_add_u32 {vr(V_VRD)}, v13, 11, v12")
        g.e(f"v_add_u32 {vr(V_VRD)}, {c.NS * 8192}, {vr(V_VRD)}")
        g.e("v_bfe_u32 v11, v0, 2, 3")
        g.e("v_lshrrev_b32 v12, 2, v11")
        g.e("v_lshlrev_b32 v12, 1, v12")
        g.e("v_and_b32 v14, 3, v0")
        g.e("v_xor_b32 v12, v12, v14")
        g.e("v_lshlrev_b32 v12, 4, v12")
        g.e("v_lshl_add_u32 v12, v13, 6, v12")
        g.e(f"v_lshl_add_u32 {vr(V_KDMA)}, v11, 8, v12")
        g.e("v_bfe_u32 v11, v0, 1, 3")
        g.e("v_and_b32 v12, 1, v0")
        g.e("v_lshlrev_b32 v12, 4, v12")
        g.e("v_lshl_add_u32 v12, v10, 5, v12")
        g.e(f"v_lshl_add_u32 {vr(V_VDMA)}, v11, 8, v12")
        g.e(f"s_lshl_b32 s28, {sr(S_W)}, 15")
        g.e("v_lshlrev_b32 v12, 8, v9")
        g.e("v_add_u32 v12, s28, v12")
        g.e(f"v_lshl_add_u32 {vr(V_QOFF)}, v10, 4, v12")
        g.e("v_and_b32 v14, 1, v10")
        g.e("v_lshl_add_u32 v12, v14, 5, v12")
        g.e(f"v_lshl_add_u32 {vr(V_OOFF)}, v13, 4, v12")
        g.e(f"s_lshl_b32 {sr(S_LB)}, {sr(S_W)}, 11")
        g.e(f"s_mov_b32 {sr(S_GOFF)}, {sr(S_LB)}")
        g.e(f"s_mov_b32 {sr(S_C)}, 0x{f32bits(C_SCALE):08x}")
        g.e(f"s_mov_b32 {sr(S_C+1)}, 0x{f32bits(C_SCALE):08x}")
        g.e("s_mul_i32 s28, s2, 126976")
        g.e("s_lshl_b32 s29, s2, 18")
        g.e("s_waitcnt lgkmcnt(0)")
        for srd, lo, hi, offs, size in ((S_SRDK, 6, 7, 29, 262144), (S_SRDQ, 4, 5, 28, 126976), (S_SRDV, 56, 57, 29, 262144), (S_SRDO, 58, 59, 28, 126976)):
            g.e(f"s_add_u32 {sr(srd)}, s{lo}, s{offs}")
            g.e(f"s_addc_u32 {sr(srd+1)}, s{hi}, 0")
            g.e(f"s_mov_b32 {sr(srd+2)}, {size}")
            g.e(f"s_mov_b32 {sr(srd+3)}, 0x20000")
        def dma(j, sel):
            ops = g.dma_ops(j)
            for k in sel:
                g.e(ops[k][0]); g.e("s_nop 0"); g.vm(ops[k][1], ("T", j))
        def qload(u):
            if u: g.e(f"v_add_u32 {vr(V_QOFF)}, 0x1000, {vr(V_QOFF)}")
            for kk in range(4):
                off = f" offset:{64*kk}" if kk else ""
                g.vm(f"buffer_load_dwordx4 {vr(Qr(u,kk),4)}, {vr(V_QOFF)}, {sr(S_SRDQ,4)}, 0 offen{off}{c.q_flags}", ("Q", u))
        def tile(j):
            dma(j, (0, 1, 2, 3))
            g.e(f"s_add_u32 {sr(S_GOFF)}, {sr(S_GOFF)}, 8192")
        dma(0, (0, 1)); g.vm_q[-1] = ("TK", 0); qload(0); dma(0, (2, 3))
        g.e(f"s_add_u32 {sr(S_GOFF)}, {sr(S_GOFF)}, 8192")
        later = [(lambda u=u: qload(u)) for u in range(1, 8)] + [(lambda j=j: tile(j)) for j in range(2, c.NS)]
        later.insert(c.T1POS, lambda: tile(1))
        for k in range(c.QLA - 1): later.pop(0)()
        g.later = later
        for u in range(8): g.e(f"v_mov_b32 {vr(V_L+u)}, 0")
        g.stamp('issued')
        g.wait_vm(("T", 0))
        g.stamp('T0')
        g.e("s_barrier")
        if c.stamps: g.e("s_waitcnt lgkmcnt(0)")
        for i in range(8): g.ds(*g.kread(0, i))
        for dt in range(8):
            for X in (0, 1): g.ds(*g.vread(0, dt, X))
            if dt == 2: g.wait_lds(("K", 0, 7))

    def build_nodes(g):
        c = g.c; NI = c.NT * 8
        nodes = []
        def qk(n):
            j, u = divmod(n, 8); b = n % c.NB; r = []
            for i in range(8):
                kt, kk = i // 4, i % 4
                s = Sr(b) + 4 * kt
                cc = "0" if kk == 0 else vr(s, 4)
                nd = Node(f"v_mfma_f32_16x16x32_bf16 {vr(s,4)}, {vr(V_K+4*i,4)}, {vr(Qr(u,kk),4)}, {cc}")
                nd.wait = ("L", ("K", j, i)) if u == 0 else None
                if kk == 3: nd.done_half = (n, kt)
                if u == 7 and j + 1 < c.NT and i % 2 == 1:
                    nd.mem.append(("ds",) + g.kread(j + 1, i - 1)); nd.mem.append(("ds",) + g.kread(j + 1, i))
                r.append(nd)
            if u == 0: r[0].marker = j
            if j == 0: r[0].pre = [("later",), ("waitvm", ("Q", u))] + [("e", t) for t in g.prescale(u)]
            if j == 0 and u == 7: r[0].pre += [("later",)] * 8
            return r
        def pv(n):
            j, u = divmod(n, 8); b = n % c.NB; r = []
            for dt in range(8):
                o = Or(u, dt)
                cc = "0" if j == 0 else ar(o, 4)
                nd = Node(f"v_mfma_f32_16x16x32_bf16 {ar(o,4)}, {vr(V_V+4*dt,4)}, {vr(Sr(b),4)}, {cc}")
                nd.wait = ("L", ("V", j, dt)) if u == 0 else None
                nd.needs_P = n
                if u == 7 and j + 1 < c.NT:
                    for X in (0, 1): nd.mem.append(("ds",) + g.vread(j + 1, dt, X))
                r.append(nd)
            return r
        for n in range(NI + c.L):
            pair = []
            if n < NI: pair += qk(n)
            if n >= c.L: pair += pv(n - c.L)
            if n < NI:
                j, u = divmod(n, 8)
                if u == (7 if j == 0 else c.L + 1):
                    if j + 1 < c.NT:
                        pair[0].shadow.append(("waitvm", ("T", j + 1)))
                        pair[1].shadow.append(("e", "s_barrier"))
                    if j + c.NS < c.NT and not c.no_dma:
                        pair[14].shadow.append(("e", f"s_add_u32 {sr(S_GOFF)}, {sr(S_GOFF)}, 8192"))
                        if c.NT > 32: pair[2].shadow.append(("e", f"s_and_b32 {sr(S_GOFF)}, {sr(S_GOFF)}, 0x3ffff"))
                        for k, (m0, d) in enumerate(g.dma_ops(j + c.NS)):
                            pair[3 + 3 * k].shadow.append(("e", m0))
                            pair[4 + 3 * k].mem.append(("vm", d, ("T", j + c.NS)))
            nodes += pair
        for i, nd in enumerate(nodes):
            w = getattr(nd, "wait", None)
            if w:
                if i == 0 or nd.pre: nd.pre.append(("waitlds", w[1]))
                else: nodes[i - 1].shadow.append(("waitlds", w[1]))
        return nodes

    def sm_ops(g, n):
        c = g.c; u = n % 8; X = Sr(n % c.NB); l = V_L + u
        ops = []
        ex = [Op(f"v_exp_f32 {vr(X+i)}, {vr(X+i)}", "e", n) for i in range(8)]
        for i in range(8): ex[i].half = i // 4
        ad = [Op(f"v_add_f32 {vr(l)}, {vr(l)}, {vr(X+i)}", "p", n, [ex[i]]) for i in range(8)]
        cv = []
        for k in range(4):
            deps = [ex[2*k], ex[2*k+1], ad[k]] + ([cv[k // 2]] if k > 0 else [])
            cv.append(Op(f"v_cvt_pk_bf16_f32 {vr(X+k)}, {vr(X+2*k)}, {vr(X+2*k+1)}", "p", n, deps))
        order = [ex[0], ex[1], ad[0], ad[1], ex[2], ex[3], cv[0], ad[2], ex[4], ad[3], cv[1], ex[5], ad[4], ad[5], ex[6], ex[7], cv[2], ad[6], ad[7], cv[3]]
        return order

    def do_item(g, it):
        k = it[0]
        if k == "e": g.e(it[1])
        elif k == "waitvm": return g.wait_vm(it[1])
        elif k == "waitlds": return g.wait_lds(it[1])
        elif k == "ds": g.ds(it[1], it[2])
        elif k == "vm": g.vm(it[1], it[2])
        elif k == "later":
            if g.later: g.later.pop(0)()
        return True

    def mainloop(g):
        c = g.c
        nodes = g.build_nodes()
        queue = []
        half_pos = {}
        cnt = [g.pos()]
        def E(fn):
            n0 = len(g.out); r = fn(); cnt[0] += len(g.out) - n0; return r
        def ready(op):
            if op.kind == "e":
                p = half_pos.get((op.item, op.half))
                return p is not None and cnt[0] - p - 1 >= 8
            for d in op.deps:
                if d.pos is None: return False
                if d.kind == "e" and cnt[0] - d.pos - 1 < 1: return False
            return True
        def place(op):
            op.pos = cnt[0]; E(lambda: g.e(op.text)); queue.remove(op)
        def flush(item):
            while any(o.item <= item for o in queue):
                for o in queue:
                    if o.item <= item and ready(o): place(o); break
                else: E(lambda: g.e("s_nop 0"))
        g.over = 0
        last_cvt = {}
        for i, nd in enumerate(nodes):
            if nd.marker is not None:
                if c.stamps and nd.marker in (1, c.NS): E(lambda: g.stamp(f"step{nd.marker}"))
                if c.stamps and nd.marker == c.NS: E(lambda: g.stamp("cyc0", True))
                if c.stamps and nd.marker == c.NT - c.NS:
                    n0 = len(g.out); g.stamp(f"step{nd.marker}"); g.stamp("cyc1", True); g.after_loop = g.out[n0:]; del g.out[n0:]
                g.out.append(f"; STEP {nd.marker}")
            for it in nd.pre: E(lambda: g.do_item(it))
            if nd.needs_P is not None:
                if any(o.item <= nd.needs_P for o in queue):
                    g.out.append(f"; flush item {nd.needs_P}")
                    flush(nd.needs_P)
                lp = max(o.pos for o in g.allops[nd.needs_P])
                while cnt[0] - lp - 1 < 2: E(lambda: g.e("s_nop 0"))
            mp = cnt[0]
            E(lambda: g.e(nd.text))
            if nd.done_half:
                half_pos[nd.done_half] = mp
                if nd.done_half[1] == 0:
                    ops = g.sm_ops(nd.done_half[0]); g.allops[nd.done_half[0]] = ops; queue += ops
            cap = 2; nsh = 0
            for it in nd.shadow:
                if E(lambda: g.do_item(it)): nsh += 1
            if nsh > 1: cap -= nsh - 1
            for it in nd.mem:
                E(lambda: g.do_item(it)); cap -= 2 if it[0] == "vm" else 1
            if cap < 0: g.over += -cap
            while cap > 0:
                pick = None
                rd = [o for o in queue if ready(o)]
                if not rd: break
                if cap == 2:
                    pick = rd[0]
                    if pick.kind == "p":
                        pl = [o for o in rd if o.kind == "p"]
                        es = [o for o in rd if o.kind == "e"]
                        nxt_ok = len(pl) >= 2 or any(o.kind == "p" and o not in rd and all(d.pos is not None or d is pick for d in o.deps) and not any(d.kind == "e" and cnt[0] + 1 - d.pos - 1 < 1 for d in o.deps if d.pos is not None) for o in queue)
                        if not nxt_ok and es: pick = es[0]
                else:
                    pl = [o for o in rd if o.kind == "p"]
                    if not pl: break
                    pick = pl[0]
                place(pick); cap -= 2 if pick.kind == "e" else 1
        assert not queue

    def epilogue(g):
        c = g.c
        g.out.append("; EPILOGUE")
        g.stamp('loopend')
        for u in range(8): g.e(f"v_mov_b32 {vr(V_T+u)}, {vr(V_L+u)}")
        g.e("s_nop 1")
        for u in range(8): g.e(f"v_permlane16_swap_b32 {vr(V_T+u)}, {vr(V_L+u)}")
        for u in range(8): g.e(f"v_add_f32 {vr(V_L+u)}, {vr(V_L+u)}, {vr(V_T+u)}")
        for u in range(8): g.e(f"v_mov_b32 {vr(V_T+u)}, {vr(V_L+u)}")
        g.e("s_nop 1")
        for u in range(8): g.e(f"v_permlane32_swap_b32 {vr(V_T+u)}, {vr(V_L+u)}")
        for u in range(8): g.e(f"v_add_f32 {vr(V_L+u)}, {vr(V_L+u)}, {vr(V_T+u)}")
        if c.fallback:
            lo, hi = f32bits(2.0 ** -30), f32bits(2.0 ** 30)
            for u in range(8): g.e(f"v_subrev_u32 {vr(V_T+u)}, 0x{lo:08x}, {vr(V_L+u)}")
            g.e(f"v_max3_u32 {vr(V_T)}, {vr(V_T)}, {vr(V_T+1)}, {vr(V_T+2)}")
            g.e(f"v_max3_u32 {vr(V_T+3)}, {vr(V_T+3)}, {vr(V_T+4)}, {vr(V_T+5)}")
            g.e(f"v_max3_u32 {vr(V_T)}, {vr(V_T)}, {vr(V_T+6)}, {vr(V_T+7)}")
            g.e(f"v_max_u32 {vr(V_T)}, {vr(V_T)}, {vr(V_T+3)}")
            g.e(f"v_cmp_lt_u32 vcc, 0x{hi-lo:08x}, {vr(V_T)}")
            if c.force_fallback: g.e("s_branch L_fallback")
            else: g.e("s_cbranch_vccnz L_fallback")
        g.e("L_final:")
        if c.xstore:
            g.e("s_load_dwordx2 s[64:65], s[0:1], 40\ns_mov_b32 s66, 0x10000000\ns_mov_b32 s67, 0x20000\ns_lshl_b32 s68, s2, 17\ns_add_u32 s68, s68, 0x2000000\ns_add_u32 s69, s68, 0x2000000\ns_waitcnt lgkmcnt(0)")
        for u in range(8): g.e(f"v_rcp_f32 {vr(V_L+u)}, {vr(V_L+u)}")
        blocks = [V_S + 8 * i for i in range(12)]
        bi = 0
        for u in range(8):
            if u: g.e(f"v_add_u32 {vr(V_OOFF)}, 0x1000, {vr(V_OOFF)}")
            ts = []
            for p in range(4):
                t = blocks[bi % len(blocks)]; bi += 1; ts.append(t)
                for i in range(8): g.e(f"v_accvgpr_read_b32 {vr(t+i)}, {ar(Or(u,2*p)+i)}")
            rl = V_L + u
            sel = "op_sel_hi:[1,0]" if rl % 2 == 0 else "op_sel:[0,1] op_sel_hi:[1,1]"
            rp = vr(rl & ~1, 2)
            for t in ts:
                for i in range(0, 8, 2): g.e(f"v_pk_mul_f32 {vr(t+i,2)}, {vr(t+i,2)}, {rp} {sel}")
            for t in ts:
                for i in range(4): g.e(f"v_cvt_pk_bf16_f32 {vr(t+i)}, {vr(t+2*i)}, {vr(t+2*i+1)}")
            g.e("s_nop 1")
            for p, t in enumerate(ts):
                g.e(f"v_permlane16_swap_b32 {vr(t)}, {vr(t+2)}")
                g.e(f"v_permlane16_swap_b32 {vr(t+1)}, {vr(t+3)}")
            for p, t in enumerate(ts):
                off = f" offset:{64*p}" if p else ""
                if not c.nostore: g.e(f"buffer_store_dwordx4 {vr(t,4)}, {vr(V_OOFF)}, {sr(S_SRDO,4)}, 0 offen{off}{c.store_flags}")
                for x in range(c.xstore): g.e(f"buffer_store_dwordx4 {vr(t,4)}, {vr(V_OOFF)}, s[64:67], s{68+x} offen{off}{c.store_flags}")
        if c.stamps:
            g.stamp('stissued')
            g.e("s_waitcnt vmcnt(0)")
            g.stamp('stdone')
            g.e("s_waitcnt lgkmcnt(0)")
            g.e("s_mov_b32 s62, 0x1000000\ns_mov_b32 s63, 0x20000")
            g.e(f"s_lshl_b32 s28, s2, 2\ns_add_u32 s28, s28, {sr(S_W)}\ns_lshl_b32 s28, s28, 6")
            g.e("s_getreg_b32 s29, hwreg(HW_REG_XCC_ID)")
            for k in range(11): g.e(f"v_mov_b32 v{8+k}, {sr(S_STAMP+2*k) if k < g.nst else 0}")
            g.e("v_mov_b32 v19, s29")
            g.e("s_mov_b64 exec, 1")
            if c.dbgst:
                g.e("s_mov_b32 s62, 256")
                g.e("v_not_b32 v20, v8")
                g.e("buffer_atomic_umax v20, off, s[60:63], 0 offset:60")
                for k in range(g.nst): g.e(f"buffer_atomic_umax v{8+k}, off, s[60:63], 0 offset:{4*k}")
            else:
                for k in range(3): g.e(f"buffer_store_dwordx4 v[{8+4*k}:{11+4*k}], off, s[60:63], s28 offset:{16*k}")
            g.e("s_waitcnt vmcnt(0)")
        g.e("L_done:")
        g.e("s_endpgm")

    def fallback(g):
        c = g.c
        base = 2 * c.NS * 8192
        g.e("L_fallback:")
        g.e("s_waitcnt vmcnt(0) lgkmcnt(0)")
        g.e(f"s_lshl_b32 s28, {sr(S_W)}, 14")
        g.e(f"s_add_u32 s28, s28, {base}")
        g.e(f"v_add_u32 {vr(V_KRD)}, s28, {vr(V_KRD)}")
        g.e(f"v_add_u32 {vr(V_VRD)}, s28, {vr(V_VRD)}")
        g.e(f"v_subrev_u32 {vr(V_VRD)}, {c.NS * 8192}, {vr(V_VRD)}")
        for u in range(8):
            g.e(f"v_mov_b32 {vr(V_L+u)}, 0")
            g.e(f"v_mov_b32 {vr(V_M+u)}, 0xff800000")
        for i in range(256): g.e(f"v_accvgpr_write_b32 {ar(i)}, 0")
        g.e(f"s_mov_b32 {sr(S_GOFF)}, 0")
        g.e("L_fb_loop:")
        for isv in (0, 1):
            for kb in range(4):
                for dh in (0, 1):
                    g.e(f"s_add_u32 m0, s28, {isv*8192 + (2*kb+dh)*1024}")
                    g.e(f"s_add_u32 s29, {sr(S_GOFF)}, {kb*2048 + dh*128}")
                    g.e(f"buffer_load_dwordx4 {vr(V_VDMA if isv else V_KDMA)}, {sr(S_SRDV if isv else S_SRDK,4)}, s29 offen lds")
        g.e("s_waitcnt vmcnt(0)")
        for i in range(8):
            kt, kk = i // 4, i % 4
            g.e(f"ds_read_b128 {vr(V_K+4*i,4)}, {vr(V_KRD)} offset:{kt*4096 + (kk//2)*1024 + (kk%2)*512}")
        g.e("s_waitcnt lgkmcnt(0)")
        for dt in range(8):
            for X in (0, 1):
                g.e(f"ds_read_b64_tr_b16 {vr(V_V+4*dt+2*X,2)}, {vr(V_VRD)} offset:{8192 + X*4096 + (dt//4)*1024 + (dt%4)*256}")
            if dt == 3: g.e("s_waitcnt lgkmcnt(0)")
        g.e("s_waitcnt lgkmcnt(0)")
        X = V_S; T = V_T
        for u in range(8):
            for i in range(8):
                kt, kk = i // 4, i % 4
                s = X + 4 * kt
                g.e(f"v_mfma_f32_16x16x32_bf16 {vr(s,4)}, {vr(V_K+4*i,4)}, {vr(Qr(u,kk),4)}, {'0' if kk == 0 else vr(s,4)}")
            g.e("s_nop 7")
            g.e(f"v_max3_f32 {vr(T)}, {vr(X)}, {vr(X+1)}, {vr(X+2)}")
            g.e(f"v_max3_f32 {vr(T)}, {vr(T)}, {vr(X+3)}, {vr(X+4)}")
            g.e(f"v_max3_f32 {vr(T)}, {vr(T)}, {vr(X+5)}, {vr(X+6)}")
            g.e(f"v_max3_f32 {vr(T)}, {vr(T)}, {vr(X+7)}, {vr(V_M+u)}")
            g.e(f"v_mov_b32 {vr(T+1)}, {vr(T)}")
            g.e("s_nop 1")
            g.e(f"v_permlane16_swap_b32 {vr(T+1)}, {vr(T)}")
            g.e(f"v_max_f32 {vr(T)}, {vr(T)}, {vr(T+1)}")
            g.e(f"v_mov_b32 {vr(T+1)}, {vr(T)}")
            g.e("s_nop 1")
            g.e(f"v_permlane32_swap_b32 {vr(T+1)}, {vr(T)}")
            g.e(f"v_max_f32 {vr(T)}, {vr(T)}, {vr(T+1)}")
            g.e(f"v_sub_f32 {vr(T+1)}, {vr(V_M+u)}, {vr(T)}")
            g.e(f"v_exp_f32 {vr(T+1)}, {vr(T+1)}")
            g.e(f"v_mov_b32 {vr(V_M+u)}, {vr(T)}")
            for i in range(8): g.e(f"v_sub_f32 {vr(X+i)}, {vr(X+i)}, {vr(T)}")
            for i in range(8): g.e(f"v_exp_f32 {vr(X+i)}, {vr(X+i)}")
            g.e(f"v_mul_f32 {vr(V_L+u)}, {vr(V_L+u)}, {vr(T+1)}")
            for i in range(8): g.e(f"v_add_f32 {vr(V_L+u)}, {vr(V_L+u)}, {vr(X+i)}")
            for k in range(4): g.e(f"v_cvt_pk_bf16_f32 {vr(X+k)}, {vr(X+2*k)}, {vr(X+2*k+1)}")
            for i0 in range(0, 32, 4):
                for i in range(4): g.e(f"v_accvgpr_read_b32 {vr(X+8+i)}, {ar(Or(u,0)+i0+i)}")
                for i in range(4): g.e(f"v_mul_f32 {vr(X+8+i)}, {vr(X+8+i)}, {vr(T+1)}")
                for i in range(4): g.e(f"v_accvgpr_write_b32 {ar(Or(u,0)+i0+i)}, {vr(X+8+i)}")
            g.e("s_nop 1")
            for dt in range(8):
                o = Or(u, dt)
                g.e(f"v_mfma_f32_16x16x32_bf16 {ar(o,4)}, {vr(V_V+4*dt,4)}, {vr(X,4)}, {ar(o,4)}")
        g.e(f"s_add_u32 {sr(S_GOFF)}, {sr(S_GOFF)}, 8192")
        g.e(f"s_cmp_lt_u32 {sr(S_GOFF)}, {c.NT*8192}")
        g.e("s_cbranch_scc1 L_fb_loop")
        g.e("s_nop 7")
        for u in range(8): g.e(f"v_mov_b32 {vr(V_T+u)}, {vr(V_L+u)}")
        g.e("s_nop 1")
        for u in range(8): g.e(f"v_permlane16_swap_b32 {vr(V_T+u)}, {vr(V_L+u)}")
        for u in range(8): g.e(f"v_add_f32 {vr(V_L+u)}, {vr(V_L+u)}, {vr(V_T+u)}")
        for u in range(8): g.e(f"v_mov_b32 {vr(V_T+u)}, {vr(V_L+u)}")
        g.e("s_nop 1")
        for u in range(8): g.e(f"v_permlane32_swap_b32 {vr(V_T+u)}, {vr(V_L+u)}")
        for u in range(8): g.e(f"v_add_f32 {vr(V_L+u)}, {vr(V_L+u)}, {vr(V_T+u)}")
        g.e("s_branch L_final")

    def fold(g, lin):
        c = g.c
        idx = {}
        for i, x in enumerate(lin):
            m = re.match(r"; STEP (\d+)", x)
            if m: idx[int(m.group(1))] = i
        def seg(a, b): return [x for x in lin[idx[a]:idx[b]] if not x.startswith("; STEP")]
        U = c.NS
        first = U
        nit = (c.NT - 2 * U) // U
        ref = seg(first, first + U)
        for k in range(1, nit):
            assert seg(first + k * U, first + (k + 1) * U) == ref, f"loop iteration {k} differs"
        out = lin[:idx[first]]
        out += [f"s_mov_b32 {sr(S_CNT)}, {nit}", ".p2align 6", "L_loop:"]
        body = list(ref)
        out += body
        out += [f"s_sub_u32 {sr(S_CNT)}, {sr(S_CNT)}, 1", f"s_cmp_lg_u32 {sr(S_CNT)}, 0", "s_cbranch_scc1 L_loop"]
        out += getattr(g, "after_loop", [])
        out += lin[idx[first + nit * U]:]
        return out

    def build(g):
        c = g.c
        g.allops = {}
        g.prologue()
        g.mainloop()
        g.epilogue()
        g.linear = list(g.out)
        body = g.fold(g.out)
        g.out = []
        if c.fallback: g.fallback()
        fb = g.out
        lds = 2 * c.NS * 8192 + (4 * 16384 if c.fallback else 0)
        hdr = open("standalone__mha_softmax__near_ridge.s.ref").read().split("\n")
        head = [x for x in hdr if x.startswith(";") and "@launch" not in x and "Override" not in x and "grid=ceil" not in x and not x.startswith("    ")]
        if c.stamps: head.append("; STAMPS " + " ".join(g.stamp_names))
        txt = "\n".join(head) + f"\n; @launch grid=(256,1,1) block=(256,1,1) lds={lds}\n"
        txt += f""".amdgcn_target "amdgcn-amd-amdhsa--gfx950"
.text
.globl {NAME}
.p2align 8
.type {NAME},@function
{NAME}:
"""
        txt += "\n".join(("" if (x.endswith(":") or x.startswith(".") or x.startswith(";")) else "    ") + x for x in body + fb)
        txt += f"""
.section .rodata,"a"
.p2align 6
.amdhsa_kernel {NAME}
  .amdhsa_next_free_vgpr 512
  .amdhsa_next_free_sgpr 72
  .amdhsa_accum_offset 256
  .amdhsa_group_segment_fixed_size 0
  .amdhsa_kernarg_size 48
  .amdhsa_user_sgpr_count 2
  .amdhsa_user_sgpr_kernarg_segment_ptr 1
  .amdhsa_system_sgpr_workgroup_id_x 1
.end_amdhsa_kernel
"""
        g.fb = fb
        return txt

if __name__ == "__main__":
    cfg = Cfg()
    outp = sys.argv[1]
    for a in sys.argv[2:]:
        k, v = a.split("=")
        cur = getattr(cfg, k)
        setattr(cfg, k, (v == "1") if isinstance(cur, bool) else (int(v) if isinstance(cur, int) else v.replace("+", " ")))
    g = Gen(cfg)
    txt = g.build()
    open(outp, "w").write(txt)
    import subprocess
    r = subprocess.run(["clang", "-x", "assembler", "-target", "amdgcn-amd-amdhsa", "-mcpu=gfx950", "-c", outp, "-o", "x.o"], capture_output=True, text=True)
    assert r.returncode == 0, r.stderr[:800]
    from hazard import check
    n = check(g.linear) + check(g.fb + g.linear[g.linear.index("L_final:"):])
    flushes = [x for x in g.linear if x.startswith("; flush")]
    print(f"wrote {outp}: {len(txt)} bytes, overflow slots={g.over}, flushes={len(flushes)} {flushes[:6]}, hazards={n}")
```
